```python
import torch

def _softmax(x, axis=-1):
    return torch.softmax(x, dim=axis)
def _gelu(x):
    return torch.nn.functional.gelu(x, approximate="tanh")
def _silu(x):
    return torch.nn.functional.silu(x)
def _sigmoid(x):
    return torch.sigmoid(x)
def _layernorm(x, axis=-1, eps=1e-5):
    m = x.mean(dim=axis, keepdim=True)
    v = x.var(dim=axis, keepdim=True, unbiased=False)
    return (x - m) / torch.sqrt(v + eps)
def _scatter_add(tgt, idx, src, axis=0):
    return tgt.clone().index_add_(axis, idx, src)
def _segment_sum(src, seg, n):
    out = torch.zeros((n,) + src.shape[1:], dtype=src.dtype)
    return out.index_add_(0, seg, src)
def _pad(x, pw):
    flat = tuple(v for pair in reversed(pw) for v in pair)
    return torch.nn.functional.pad(x, flat)

kernel_name = 'concat_heads__spectral_gfnet__ssm_conv_s4d__prompt'

def setup_inputs():

    _w = (lambda a: (lambda t: t.to(torch.bfloat16) if t.is_floating_point() else t)(torch.as_tensor(a)))
    def _A_setup():
        B, S, D = 1, 2048, 1024
        Df = D // 2 + 1
        return {
            "x": _w((lambda *s: torch.randn(*s, dtype=torch.bfloat16) * 0.05)(B, S, D)),
            "w_r": _w((lambda *s: torch.randn(*s, dtype=torch.bfloat16) * 0.8)(S, Df) * 0.02),
            "w_i": _w((lambda *s: torch.randn(*s, dtype=torch.bfloat16) * 0.8)(S, Df) * 0.02),
        }
    _A_in = _A_setup()

    def _B_setup():
        Bsz, L, D, N = 1, 2048, 1024, 128
        return {
            "u": _w((lambda *s: torch.randn(*s, dtype=torch.bfloat16) * 0.05)(Bsz, L, D)),
            "log_A_real": _w((lambda *s: torch.randn(*s, dtype=torch.bfloat16) * 6.4)(D, N) * 0.5),
            "A_imag": _w((lambda *s: torch.randn(*s, dtype=torch.bfloat16) * 0.05)(D, N) * 3.14),
            "C_real": _w((lambda *s: torch.randn(*s, dtype=torch.bfloat16) * 0.05)(D, N) / N ** 0.5),
            "C_imag": _w((lambda *s: torch.randn(*s, dtype=torch.bfloat16) * 0.05)(D, N) / N ** 0.5),
            "log_dt": _w((lambda *s: torch.randn(*s, dtype=torch.bfloat16) * 0.05)(D) * 0.5 - 4.0),
            "D_skip": _w((lambda *s: torch.randn(*s, dtype=torch.bfloat16) * 0.05)(D)),
        }
    _B_in = _B_setup()

    return {
        "A_x": _A_in["x"],
        "A_w_r": _A_in["w_r"],
        "A_w_i": _A_in["w_i"],
        "B_u": _B_in["u"],
        "B_log_A_real": _B_in["log_A_real"],
        "B_A_imag": _B_in["A_imag"],
        "B_C_real": _B_in["C_real"],
        "B_C_imag": _B_in["C_imag"],
        "B_log_dt": _B_in["log_dt"],
        "B_D_skip": _B_in["D_skip"],
    }

def reference(A_x, A_w_r, A_w_i, B_u, B_log_A_real, B_A_imag, B_C_real, B_C_imag, B_log_dt, B_D_skip):
    def _A_ref(x, w_r, w_i):
        B, S, D = x.shape
        X = (lambda x, axes=(-2,-1): torch.fft.rfft2(x.float(), dim=axes))(x, axes=(-2, -1))
        W = w_r + 1j * w_i
        X = X * W
        y = (lambda x, s, axes=(-2,-1): torch.fft.irfft2(x, s=s, dim=axes).to(torch.bfloat16))(X, (S, D), axes=(-2, -1))
        return y

    def _B_ref(u, log_A_real, A_imag, C_real, C_imag, log_dt, D_skip):
        L = u.shape[1]
        dt = torch.exp(log_dt)
        A = -torch.exp(log_A_real) + 1j * A_imag
        C = (C_real + 1j * C_imag) * dt[:, None]
        pos = (lambda x, dt: x.to(dt))(torch.arange(L), log_dt.dtype)
        P = torch.exp((A * dt[:, None])[:, :, None] * pos[None, None, :])
        K = 2.0 * torch.einsum("dn,dnl->dl", C, P).real
        L2 = 2 * L
        u_t = (lambda x, *d: x.permute(*d))(u, 0, 2, 1)
        Kf = (lambda x, *a, **k: torch.fft.rfft(x.float(), *a, **k))(K, L2)
        Uf = (lambda x, *a, **k: torch.fft.rfft(x.float(), *a, **k))(u_t, L2)
        y = (lambda x, *a, **k: torch.fft.irfft(x, *a, **k).to(torch.bfloat16))(Uf * Kf[None, :, :], L2)[:, :, :L]
        y = (lambda x, *d: x.permute(*d))(y, 0, 2, 1)
        return y + u * D_skip[None, None, :]

    a = _A_ref(A_x, A_w_r, A_w_i)
    b = _B_ref(B_u, B_log_A_real, B_A_imag, B_C_real, B_C_imag, B_log_dt, B_D_skip)
    return torch.concatenate([a, b], axis=-1)
```

```python
import math, struct

def f2u(x):
    return struct.unpack('<I', struct.pack('<f', x))[0]

class Asm:
    def __init__(self):
        self.lines = []
    def __call__(self, s):
        self.lines.append('    ' + s)
    def label(self, s):
        self.lines.append(s + ':')
    def raw(self, s):
        self.lines.append(s)
    def comment(self, s):
        self.lines.append('    ; ' + s)
    def stamp(self, k):
        if getattr(self, 'stamps', False):
            self.lines.append(f'    s_memtime s[{60+2*k}:{61+2*k}]')
    def stamp_flush(self, n, srd, off):
        if not getattr(self, 'stamps', False): return
        A = self
        A('s_waitcnt lgkmcnt(0) vmcnt(0)')
        A('v_lshrrev_b32 v1, 6, v0')
        A('s_lshl_b32 s58, s2, 4')
        A('v_add_u32 v1, s58, v1')
        A('v_lshlrev_b32 v1, 6, v1')
        for k in range(n):
            A(f's_sub_u32 s59, s{60+2*k}, s60')
            A('v_mov_b32 v2, s59')
            A(f'buffer_store_dword v2, v1, s[{srd}:{srd+3}], s57 offen offset:{4*k}')
    def text(self):
        return '\n'.join(self.lines) + '\n'

class Pool:
    def __init__(self, start, n):
        assert start % 2 == 0
        self.free = [start + 2*i for i in range(n)]
        self.hi = start
    def get(self):
        r = self.free.pop(0)
        self.hi = max(self.hi, r+2)
        return r
    def put(self, r):
        assert r not in self.free
        self.free.append(r)

def P(r):
    return f'v[{r}:{r+1}]'

PADD_MODS = {0: '', 1: ' op_sel:[0,1] op_sel_hi:[1,0] neg_lo:[0,1]',
             2: ' neg_lo:[0,1] neg_hi:[0,1]', 3: ' op_sel:[0,1] op_sel_hi:[1,0] neg_hi:[0,1]'}

class V:
    __slots__ = ('r', 'rot')
    def __init__(self, r, rot=0):
        self.r = r; self.rot = rot % 4

class Cx:
    def __init__(self, A, pool):
        self.A = A; self.pool = pool
    def addq(self, d, a, b, q):
        qq = (b.rot + q - a.rot) % 4
        self.A(f'v_pk_add_f32 {P(d)}, {P(a.r)}, {P(b.r)}{PADD_MODS[qq]}')
        return V(d, a.rot)
    def cmul(self, d, x, w, conj=False):
        t = self.pool.get()
        self.A(f'v_pk_mul_f32 {P(t)}, {P(x.r)}, {w} op_sel:[0,0] op_sel_hi:[1,0]')
        neg = 'neg_hi:[0,1,0]' if conj else 'neg_lo:[0,1,0]'
        self.A(f'v_pk_fma_f32 {P(d)}, {P(x.r)}, {w}, {P(t)} op_sel:[1,1,0] op_sel_hi:[0,1,1] {neg}')
        self.pool.put(t)
        return V(d, x.rot)
    def resolve(self, x):
        if x.rot == 0: return x
        m = {1: 'op_sel:[1,0] op_sel_hi:[0,0] neg_lo:[1,0]', 2: 'neg_lo:[1,0] neg_hi:[1,0] op_sel_hi:[1,0]', 3: 'op_sel:[1,0] op_sel_hi:[0,0] neg_hi:[1,0]'}[x.rot]
        t = self.pool.get()
        self.A(f'v_pk_mul_f32 {P(t)}, {P(x.r)}, 1.0 {m}')
        self.pool.put(x.r)
        return V(t, 0)
    def bfly2(self, a, b):
        t = self.pool.get()
        y1 = self.addq(t, a, b, 2)
        y0 = self.addq(a.r, a, b, 0)
        self.pool.put(b.r)
        return [y0, y1]
    def bfly4(self, x, sign):
        a, b, c, d = x
        t = self.pool.get()
        t1 = self.addq(t, a, c, 2)
        t0 = self.addq(a.r, a, c, 0)
        t3 = self.addq(c.r, b, d, 2)
        t2 = self.addq(b.r, b, d, 0)
        y2 = self.addq(d.r, t0, t2, 2)
        y0 = self.addq(t0.r, t0, t2, 0)
        q = 3 if sign < 0 else 1
        y1 = self.addq(t2.r, t1, t3, q)
        y3 = self.addq(t1.r, t1, t3, (q+2) % 4)
        self.pool.put(t3.r)
        return [y0, y1, y2, y3]
    def dft(self, x, sign, consts):
        R = len(x)
        if R == 2: return self.bfly2(*x)
        if R == 4: return self.bfly4(x, sign)
        R1, R2 = {8: (2, 4), 16: (4, 4)}[R]
        mid = [[None]*R2 for _ in range(R1)]
        for n2 in range(R2):
            y = self.dft([x[n1*R2+n2] for n1 in range(R1)], sign, consts)
            for k1 in range(R1):
                e = (n2*k1*(16//R)) % 16
                v = y[k1]
                quad, rem = e // 4, e % 4
                if rem:
                    v = self.cmul(v.r, v, consts[rem], conj=(sign > 0))
                v = V(v.r, v.rot + (3*quad if sign < 0 else quad))
                mid[k1][n2] = v
        out = [None]*R
        for k1 in range(R1):
            y = self.dft(mid[k1], sign, consts)
            for k2 in range(R2):
                out[k1 + R1*k2] = y[k2]
        return out

def emit_w16_consts(A, sbase):
    c = {}
    for k in (1, 2, 3):
        A(f's_mov_b32 s{sbase+2*(k-1)}, 0x{f2u(math.cos(2*math.pi*k/16)):08x}')
        A(f's_mov_b32 s{sbase+2*(k-1)+1}, 0x{f2u(-math.sin(2*math.pi*k/16)):08x}')
        c[k] = f's[{sbase+2*(k-1)}:{sbase+2*(k-1)+1}]'
    return c

G128 = [list(range(0,4))+list(range(12,16))+list(range(20,28)), list(range(4,12))+list(range(16,20))+list(range(28,32))]
G128 = G128 + [[l+32 for l in g] for g in G128]
def conflicts(kind, addrs):
    if kind == 'r64': groups = [range(0,32), range(32,64)]; nb = 64; nd = 2
    elif kind == 'r128': groups = G128; nb = 64; nd = 4
    elif kind == 'r32': groups = [range(0,32), range(32,64)]; nb = 32; nd = 1
    elif kind == 'w64': groups = [range(16*i,16*i+16) for i in range(4)]; nb = 32; nd = 2
    elif kind == 'w128': groups = [range(8*i,8*i+8) for i in range(8)]; nb = 32; nd = 4
    elif kind == 'w32': groups = [range(0,32), range(32,64)]; nb = 32; nd = 1
    tot = 0
    for g in groups:
        banks = {}
        for l in g:
            for d in range(nd):
                dw = addrs[l]//4 + d
                banks.setdefault(dw % nb, set()).add(dw)
        tot += max(len(s) for s in banks.values())
    return tot, len(groups)
```

```python
import sys
from asmlib import *
import kA

def finish(A, kernels, fname):
    hdr = []
    for (n, g, b, l, v) in kernels:
        hdr.append(f'; @launch kernel={n} grid=({g},1,1) block=({b},1,1) lds={l}')
    hdr.append('.amdgcn_target "amdgcn-amd-amdhsa--gfx950"')
    hdr.append('.text')
    tail = ['.section .rodata,"a"']
    seen = set()
    for (n, g, b, l, v) in kernels:
        if n in seen: continue
        seen.add(n)
        acc = (v + 3)//4*4
        tail += ['.p2align 6', f'.amdhsa_kernel {n}', f'  .amdhsa_next_free_vgpr {v}', '  .amdhsa_next_free_sgpr 96',
                 f'  .amdhsa_accum_offset {acc}', '  .amdhsa_group_segment_fixed_size 0', '  .amdhsa_kernarg_size 104',
                 '  .amdhsa_user_sgpr_count 2', '  .amdhsa_user_sgpr_kernarg_segment_ptr 1',
                 '  .amdhsa_system_sgpr_workgroup_id_x 1', '.end_amdhsa_kernel']
    open(fname, 'w').write('\n'.join(hdr) + '\n' + A.text() + '\n'.join(tail) + '\n')

if __name__ == '__main__':
    A = Asm()
    v1 = kA.gen_p1(A, 'p1_kernel', 0)
    v3 = kA.gen_p3(A, 'p3_kernel', 0, scale=1/2048)
    finish(A, [('p1_kernel', 256, 256, kA.LDS_P1, v1), ('p3_kernel', 256, 256, kA.LDS_P1, v3)], sys.argv[1])
```

```python
from asmlib import *

CS1 = 2312; K1S = 144
CFG = dict(CPS=32768, XMAP=1)
P2P = 10; CS2 = 2576
LDS_P1 = max(2*CS1, 2*CS2)*8

def srd(A, s, ptr, nbytes):
    A(f's_mov_b32 s{s}, s{ptr}')
    A(f's_mov_b32 s{s+1}, s{ptr+1}')
    A(f's_mov_b32 s{s+2}, {nbytes}')
    A(f's_mov_b32 s{s+3}, 0x00020000')

def gen_tw(A, base, R, dst):
    for k in range(1, R):
        d = dst[k]
        if k == 1:
            A(f'v_cos_f32 v{d}, v{base}')
            A(f'v_sin_f32_e64 v{d+1}, -v{base}')
        else:
            A(f'v_mul_f32 v{d+1}, 0x{f2u(float(k)):08x}, v{base}')
            A(f'v_cos_f32 v{d}, v{d+1}')
            A(f'v_sin_f32_e64 v{d+1}, -v{d+1}')

def colpair(A):
    if CFG['XMAP'] == 1:
        A('s_and_b32 s16, s2, 7')
        A('s_lshl_b32 s16, s16, 5')
        A('s_lshr_b32 s17, s2, 3')
        A('s_add_u32 s16, s16, s17')
    elif CFG['XMAP'] == 0:
        A('s_mov_b32 s16, s2')
    elif CFG['XMAP'] == 2:
        A('s_and_b32 s16, s2, 7')
        A('s_lshr_b32 s17, s2, 3')
        A('s_and_b32 s18, s17, 15')
        A('s_lshr_b32 s17, s17, 4')
        A('s_lshl_b32 s17, s17, 3')
        A('s_add_u32 s16, s16, s17')
        A('s_lshl_b32 s16, s16, 4')
        A('s_add_u32 s16, s16, s18')

def gen_p1(A, name, ws_off):
    A.raw(f'.globl {name}\n.p2align 8\n.type {name},@function')
    A.label(name)
    A('s_cmp_ge_u32 s2, 256')
    A(f's_cbranch_scc1 L_{name}_end')
    A('s_load_dwordx2 s[4:5], s[0:1], 0')
    A('s_load_dwordx2 s[6:7], s[0:1], 96')
    colpair(A)
    A('v_and_b32 v1, 1, v0')
    A('v_lshrrev_b32 v2, 1, v0')
    A('v_lshlrev_b32 v3, 11, v2')
    A('v_lshl_add_u32 v3, v1, 2, v3')
    A('s_lshl_b32 s17, s16, 3')
    consts = emit_w16_consts(A, 20)
    A('s_waitcnt lgkmcnt(0)')
    srd(A, 8, 4, 4194304)
    srd(A, 12, 6, 268435456)
    RAW = 80
    for n1 in range(16):
        A(f'buffer_load_dword v{RAW+n1}, v3, s[8:11], s17 offen')
        if n1 < 15: A('s_add_u32 s17, s17, 0x40000')
    TW = {k: 40 + 2*k for k in range(16)}
    A('v_cvt_f32_u32 v4, v2')
    A(f'v_mul_f32 v4, 0x{f2u(1/2048):08x}, v4')
    gen_tw(A, 4, 16, TW)
    A(f'v_mul_u32_u24 v5, {CS1}, v1')
    A('v_add_u32 v5, v5, v2')
    A('v_lshlrev_b32 v5, 3, v5')
    A('v_lshrrev_b32 v6, 3, v2')
    A('v_and_b32 v7, 7, v2')
    A(f'v_mul_u32_u24 v8, {K1S}, v6')
    A(f'v_mul_u32_u24 v9, {CS1}, v1')
    A('v_add3_u32 v8, v8, v9, v7')
    A('v_lshlrev_b32 v8, 3, v8')
    A(f'v_mul_u32_u24 v9, {CS2}, v1')
    A(f'v_mul_u32_u24 v10, {P2P}, v6')
    A('v_add3_u32 v10, v10, v9, v7')
    A('v_lshlrev_b32 v10, 3, v10')
    A(f'v_mul_u32_u24 v11, {P2P}, v2')
    A('v_add_u32 v11, v11, v9')
    A('v_lshlrev_b32 v11, 3, v11')
    A('v_cvt_f32_u32 v12, v7')
    A(f'v_mul_f32 v12, 0x{f2u(1/128):08x}, v12')
    pool = Pool(100, 20)
    cx = Cx(A, pool)
    x = []
    for n1 in range(16):
        A(f's_waitcnt vmcnt({15-n1})')
        r = pool.get()
        A(f'v_lshlrev_b32 v{r}, 16, v{RAW+n1}')
        A(f'v_and_b32 v{r+1}, 0xffff0000, v{RAW+n1}')
        x.append(V(r))
    y = cx.dft(x, -1, consts)
    for k1 in range(16):
        v = y[k1]
        if k1: v = cx.cmul(v.r, v, P(TW[k1]))
        v = cx.resolve(v)
        A(f'ds_write_b64 v5, {P(v.r)} offset:{k1*K1S*8}')
        pool.put(v.r)
    gen_tw(A, 12, 16, TW)
    A('s_waitcnt lgkmcnt(0)')
    A('s_barrier')
    x = []
    for n2 in range(16):
        r = pool.get()
        A(f'ds_read_b64 {P(r)}, v8 offset:{n2*64}')
        x.append(V(r))
    A('s_waitcnt lgkmcnt(0)')
    A('s_barrier')
    y = cx.dft(x, -1, consts)
    for k2 in range(16):
        v = y[k2]
        if k2: v = cx.cmul(v.r, v, P(TW[k2]))
        v = cx.resolve(v)
        A(f'ds_write_b64 v10, {P(v.r)} offset:{k2*16*P2P*8}')
        pool.put(v.r)
    A('s_waitcnt lgkmcnt(0)')
    A('s_barrier')
    base = 40
    for k2hi in range(2):
        for q in range(4):
            r = base + (k2hi*8 + 2*q)*2
            A(f'ds_read_b128 v[{r}:{r+3}], v11 offset:{(k2hi*128*P2P + 2*q)*8}')
    A('v_lshlrev_b32 v13, 3, v0')
    A(f"s_mul_i32 s18, s16, {CFG['CPS']}")
    A(f's_add_u32 s18, s18, {ws_off}')
    for k2hi in range(2):
        A(f's_waitcnt lgkmcnt({4*(1-k2hi)})')
        x = [V(base + (k2hi*8+n3)*2) for n3 in range(8)]
        y = cx.dft(x, -1, consts)
        for k3 in range(8):
            v = cx.resolve(y[k3])
            rho = k2hi + 2*k3
            A(f's_add_u32 s19, s18, {rho*2048}')
            A(f'buffer_store_dwordx2 {P(v.r)}, v13, s[12:15], s19 offen')
    A.label(f'L_{name}_end')
    A('s_endpgm')
    return 144

def gen_p3(A, name, ws_off, scale=None):
    A.raw(f'.globl {name}\n.p2align 8\n.type {name},@function')
    A.label(name)
    A('s_cmp_ge_u32 s2, 256')
    A(f's_cbranch_scc1 L_{name}_end')
    A('s_load_dwordx2 s[4:5], s[0:1], 80')
    A('s_load_dwordx2 s[6:7], s[0:1], 96')
    colpair(A)
    A('v_and_b32 v1, 1, v0')
    A('v_lshrrev_b32 v2, 1, v0')
    consts = emit_w16_consts(A, 20)
    A('v_lshlrev_b32 v13, 3, v0')
    A(f"s_mul_i32 s18, s16, {CFG['CPS']}")
    A(f's_add_u32 s18, s18, {ws_off}')
    A('s_waitcnt lgkmcnt(0)')
    srd(A, 8, 4, 8388608)
    srd(A, 12, 6, 268435456)
    base = 100
    for k2hi in range(2):
        for k3 in range(8):
            rho = k2hi + 2*k3
            r = base + (k2hi*8+k3)*2
            A(f's_add_u32 s19, s18, {rho*2048}')
            A(f'buffer_load_dwordx2 {P(r)}, v13, s[12:15], s19 offen')
    TW = {k: 40 + 2*k for k in range(16)}
    A('v_cvt_f32_u32 v4, v2')
    A(f'v_mul_f32 v4, 0x{f2u(1/2048):08x}, v4')
    A(f'v_mul_u32_u24 v5, {CS1}, v1')
    A('v_add_u32 v5, v5, v2')
    A('v_lshlrev_b32 v5, 3, v5')
    A('v_lshrrev_b32 v6, 3, v2')
    A('v_and_b32 v7, 7, v2')
    A(f'v_mul_u32_u24 v8, {K1S}, v6')
    A(f'v_mul_u32_u24 v9, {CS1}, v1')
    A('v_add3_u32 v8, v8, v9, v7')
    A('v_lshlrev_b32 v8, 3, v8')
    A(f'v_mul_u32_u24 v9, {CS2}, v1')
    A(f'v_mul_u32_u24 v10, {P2P}, v6')
    A('v_add3_u32 v10, v10, v9, v7')
    A('v_lshlrev_b32 v10, 3, v10')
    A(f'v_mul_u32_u24 v11, {P2P}, v2')
    A('v_add_u32 v11, v11, v9')
    A('v_lshlrev_b32 v11, 3, v11')
    A('v_cvt_f32_u32 v12, v7')
    A(f'v_mul_f32 v12, 0x{f2u(1/128):08x}, v12')
    gen_tw(A, 12, 16, TW)
    pool = Pool(14, 12)
    cx = Cx(A, pool)
    for k2hi in range(2):
        A(f's_waitcnt vmcnt({8*(1-k2hi)})')
        x = [V(base + (k2hi*8+k3)*2) for k3 in range(8)]
        y = cx.dft(x, +1, consts)
        for n3 in range(8):
            v = cx.resolve(y[n3])
            A(f'ds_write_b64 v11, {P(v.r)} offset:{(k2hi*128*P2P + n3)*8}')
            pool.put(v.r)
    A('s_waitcnt lgkmcnt(0)')
    A('s_barrier')
    x = []
    for k2 in range(16):
        r = pool.get()
        A(f'ds_read_b64 {P(r)}, v10 offset:{k2*16*P2P*8}')
        x.append(V(r))
    A('s_waitcnt lgkmcnt(0)')
    A('s_barrier')
    for k2 in range(1, 16):
        x[k2] = cx.cmul(x[k2].r, x[k2], P(TW[k2]), conj=True)
    y = cx.dft(x, +1, consts)
    for n2 in range(16):
        v = cx.resolve(y[n2])
        A(f'ds_write_b64 v8, {P(v.r)} offset:{n2*64}')
        pool.put(v.r)
    gen_tw(A, 4, 16, TW)
    A('s_waitcnt lgkmcnt(0)')
    A('s_barrier')
    x = []
    for k1 in range(16):
        r = pool.get()
        A(f'ds_read_b64 {P(r)}, v5 offset:{k1*K1S*8}')
        x.append(V(r))
    A('v_lshlrev_b32 v3, 12, v2')
    A('v_lshl_add_u32 v3, v1, 2, v3')
    A('s_lshl_b32 s17, s16, 3')
    A('s_waitcnt lgkmcnt(0)')
    for k1 in range(1, 16):
        x[k1] = cx.cmul(x[k1].r, x[k1], P(TW[k1]), conj=True)
    y = cx.dft(x, +1, consts)
    for n1 in range(16):
        v = cx.resolve(y[n1])
        if scale is not None:
            A(f'v_mul_f32 v{v.r}, 0x{f2u(scale):08x}, v{v.r}')
            A(f'v_mul_f32 v{v.r+1}, 0x{f2u(scale):08x}, v{v.r+1}')
        A(f'v_cvt_pk_bf16_f32 v{v.r}, v{v.r}, v{v.r+1}')
        A(f'buffer_store_dword v{v.r}, v3, s[8:11], s17 offen')
        if n1 < 15: A('s_add_u32 s17, s17, 0x80000')
    A.label(f'L_{name}_end')
    A('s_endpgm')
    return 144
```

```python
from asmlib import *
from kA import srd, gen_tw, CFG

RS = 5232; KS = 72; PB = 10
LDS_P2 = 8*RS

def gen_p2(A, name, ws_off):
    A.raw(f'.globl {name}\n.p2align 8\n.type {name},@function')
    A.label(name)
    A('s_cmp_ge_u32 s2, 257')
    A(f's_cbranch_scc1 L_{name}_end')
    A.stamp(0)
    A('s_mov_b32 s57, 0x4000000')
    A('s_load_dwordx2 s[4:5], s[0:1], 8')
    A('s_load_dwordx2 s[6:7], s[0:1], 16')
    A('s_load_dwordx2 s[28:29], s[0:1], 96')
    consts = emit_w16_consts(A, 20)
    A('v_and_b32 v1, 7, v0')
    A('v_lshrrev_b32 v2, 3, v0')
    A('s_lshl_b32 s16, s2, 2')
    A('s_add_u32 s17, s16, 1')
    A('s_sub_u32 s18, 2040, s16')
    A('v_mov_b32 v3, s17')
    A('v_mov_b32 v4, s18')
    A('v_cmp_gt_u32 vcc, 4, v1')
    A('s_nop 1')
    A('v_cndmask_b32 v3, v4, v3, vcc')
    A('v_add_u32 v3, v3, v1')
    A('s_cmp_eq_u32 s2, 256')
    A('s_cselect_b32 s19, 0, -1')
    A('v_and_b32 v3, s19, v3')
    A('v_lshlrev_b32 v3, 4, v3')
    A(f"v_mul_u32_u24 v5, {CFG['CPS']}, v2")
    A('v_add_u32 v3, v3, v5')
    A(f'v_mul_u32_u24 v4, {RS}, v1')
    A('v_lshl_add_u32 v4, v2, 4, v4')
    A('v_lshrrev_b32 v5, 6, v0')
    A('s_nop 0')
    A('v_readfirstlane_b32 s30, v5')
    A('v_and_b32 v6, 63, v0')
    A('s_waitcnt lgkmcnt(0)')
    srd(A, 8, 4, 2101248)
    srd(A, 12, 6, 2101248)
    srd(A, 32, 28, 268435456)
    ST = 100
    A(f's_mov_b32 s31, {ws_off}')
    for i in range(8):
        A(f'buffer_load_dwordx4 v[{ST+4*i}:{ST+4*i+3}], v3, s[32:35], s31 offen')
        if i < 7: A(f"s_add_u32 s31, s31, {32*CFG['CPS']}")
    A.stamp(9)
    A('s_add_u32 s36, s17, s30')
    A('s_and_b32 s36, s36, s19')
    A('s_sub_u32 s37, 2048, s36')
    A('s_and_b32 s37, s37, 2047')
    A('s_mul_i32 s38, s36, 1026')
    A('s_mul_i32 s39, s37, 1026')
    W1 = [140 + 2*k for k in range(8)]
    W2 = [156 + 2*k for k in range(8)]
    XW = 172
    for r in range(140, 176): A(f'v_mov_b32 v{r}, 0')
    A('v_lshlrev_b32 v7, 1, v6')
    A('v_sub_u32 v8, 128, v7')
    A('v_mov_b32 v9, 0')
    for k3 in range(8):
        A(f'buffer_load_short_d16_hi v{W1[k3]}, v7, s[8:11], s38 offen offset:{128*k3}')
        A(f'buffer_load_short_d16_hi v{W1[k3]+1}, v7, s[12:15], s38 offen offset:{128*k3}')
        A(f'buffer_load_short_d16_hi v{W2[k3]}, v8, s[8:11], s39 offen offset:{128*(7-k3)}')
        A(f'buffer_load_short_d16_hi v{W2[k3]+1}, v8, s[12:15], s39 offen offset:{128*(7-k3)}')
    A(f'buffer_load_short_d16_hi v{XW}, v9, s[8:11], s39 offen')
    A(f'buffer_load_short_d16_hi v{XW+1}, v9, s[12:15], s39 offen')
    A(f'buffer_load_short_d16_hi v{XW+2}, v9, s[8:11], s38 offen offset:1024')
    A(f'buffer_load_short_d16_hi v{XW+3}, v9, s[12:15], s38 offen offset:1024')
    A.stamp(10)
    T1 = {k: 40 + 2*k for k in range(8)}
    T2 = {k: 56 + 2*k for k in range(8)}
    TP = [72 + 2*k for k in range(8)]
    T8 = 88
    A('v_cvt_f32_u32 v10, v6')
    A(f'v_mul_f32 v11, 0x{f2u(1/512):08x}, v10')
    gen_tw(A, 11, 8, T1)
    A('v_and_b32 v12, 7, v6')
    A('v_lshrrev_b32 v13, 3, v6')
    A('v_cvt_f32_u32 v14, v12')
    A(f'v_mul_f32 v15, 0x{f2u(1/64):08x}, v14')
    gen_tw(A, 15, 8, T2)
    A(f'v_mul_f32 v11, 0x{f2u(1/1024):08x}, v10')
    for k3 in range(8):
        A(f'v_add_f32 v{TP[k3]+1}, 0x{f2u(k3/16):08x}, v11')
        A(f'v_cos_f32 v{TP[k3]}, v{TP[k3]+1}')
        A(f'v_sin_f32_e64 v{TP[k3]+1}, -v{TP[k3]+1}')
    A(f'v_mul_f32 v15, 0x{f2u(1/8):08x}, v14')
    A('v_cmp_gt_u32 vcc, 8, v6')
    A('s_nop 1')
    A('v_cndmask_b32 v15, 0, v15, vcc')
    A(f'v_cos_f32 v{T8}, v15')
    A(f'v_sin_f32_e64 v{T8+1}, -v15')
    A(f's_mul_i32 s40, s30, {RS}')
    A('s_sub_u32 s41, 7, s30')
    A(f's_mul_i32 s41, s41, {RS}')
    A('v_lshlrev_b32 v16, 3, v6')
    A(f'v_mul_u32_u24 v17, {KS}, v13')
    A('v_add_u32 v17, v17, v12')
    A('v_lshlrev_b32 v17, 3, v17')
    A(f'v_mul_u32_u24 v18, {PB}, v13')
    A('v_add_u32 v18, v18, v12')
    A('v_lshlrev_b32 v18, 3, v18')
    A(f'v_mul_u32_u24 v19, {PB*8}, v6')
    A('v_sub_u32 v20, 64, v6')
    A('v_and_b32 v20, 63, v20')
    A(f'v_mul_u32_u24 v20, {PB*8}, v20')
    for (dst, sb, l3) in ((22, 40, 19), (26, 41, 20)):
        A(f'v_add_u32 v{dst}, s{sb}, v16')
        A(f'v_add_u32 v{dst+1}, s{sb}, v17')
        A(f'v_add_u32 v{dst+2}, s{sb}, v18')
        A(f'v_add_u32 v{dst+3}, s{sb}, v{l3}')
    A.stamp(1)
    for i in range(8):
        A(f's_waitcnt vmcnt({36+7-i})')
        A(f'ds_write_b128 v4, v[{ST+4*i}:{ST+4*i+3}] offset:{512*i}')
    A('s_waitcnt lgkmcnt(0)')
    A('s_barrier')
    A.stamp(2)
    pool = Pool(176, 24)
    cx = Cx(A, pool)
    rows = []
    X = []
    for ad in (22, 26):
        x = []
        for n1 in range(8):
            r = pool.get()
            A(f'ds_read_b64 {P(r)}, v{ad} offset:{n1*512}')
            x.append(V(r))
        X.append(x)
    for ri, ad in enumerate((22, 26)):
        A(f's_waitcnt lgkmcnt({8*(1-ri)})' if ri == 0 else 's_waitcnt lgkmcnt(8)')
        y = cx.dft(X[ri], -1, consts)
        for k1 in range(8):
            v = y[k1]
            if k1: v = cx.cmul(v.r, v, P(T1[k1]))
            v = cx.resolve(v)
            A(f'ds_write_b64 v{ad}, {P(v.r)} offset:{k1*KS*8}')
            pool.put(v.r)
    X = []
    for ad in (22, 26):
        x = []
        for n2 in range(8):
            r = pool.get()
            A(f'ds_read_b64 {P(r)}, v{ad+1} offset:{n2*64}')
            x.append(V(r))
        X.append(x)
    for ri, ad in enumerate((22, 26)):
        A('s_waitcnt lgkmcnt(8)')
        y = cx.dft(X[ri], -1, consts)
        for k2 in range(8):
            v = y[k2]
            if k2: v = cx.cmul(v.r, v, P(T2[k2]))
            elif ri == 1: v = cx.cmul(v.r, v, P(T8))
            v = cx.resolve(v)
            A(f'ds_write_b64 v{ad+2}, {P(v.r)} offset:{k2*8*PB*8}')
            pool.put(v.r)
    DA = 100; DB = 116
    for (ad, base) in ((22, DA), (26, DB)):
        for q in range(4):
            A(f'ds_read_b128 v[{base+4*q}:{base+4*q+3}], v{ad+3} offset:{16*q}')
    A('s_waitcnt lgkmcnt(4)')
    a = cx.dft([V(DA+2*n) for n in range(8)], -1, consts)
    A('s_waitcnt lgkmcnt(0)')
    b = cx.dft([V(DB+2*n) for n in range(8)], -1, consts)
    a = [cx.resolve(v) for v in a]; b = [cx.resolve(v) for v in b]
    A.stamp(3)
    A('s_waitcnt vmcnt(0)')
    A.stamp(4)
    sc = 1.0/(2*2048*1024)
    A(f's_mov_b32 s42, 0x{f2u(sc):08x}')
    A(f's_mov_b32 s43, 0x{f2u(sc):08x}')
    A(f'v_pk_add_f32 {P(XW)}, {P(W1[0])}, {P(XW)} neg_hi:[0,1]')
    A(f'v_pk_add_f32 {P(XW+2)}, {P(W2[0])}, {P(XW+2)} neg_hi:[0,1]')
    A(f'v_pk_mul_f32 {P(XW)}, {P(XW)}, 0.5 op_sel_hi:[1,0]')
    A(f'v_pk_mul_f32 {P(XW+2)}, {P(XW+2)}, 0.5 op_sel_hi:[1,0]')
    A('v_cmp_eq_u32 vcc, 0, v6')
    A('s_nop 1')
    A(f'v_cndmask_b32 v{W1[0]}, v{W1[0]}, v{XW}, vcc')
    A(f'v_cndmask_b32 v{W1[0]+1}, v{W1[0]+1}, v{XW+1}, vcc')
    A(f'v_cndmask_b32 v{W2[0]}, v{W2[0]}, v{XW+2}, vcc')
    A(f'v_cndmask_b32 v{W2[0]+1}, v{W2[0]+1}, v{XW+3}, vcc')
    z1 = [None]*8; z2 = [None]*8
    for k3 in range(8):
        Av = a[k3]; Bv = b[7-k3]
        A(f'v_pk_mul_f32 {P(W1[k3])}, {P(W1[k3])}, s[42:43]')
        A(f'v_pk_mul_f32 {P(W2[k3])}, {P(W2[k3])}, s[42:43]')
        E = pool.get(); O = pool.get()
        A(f'v_pk_add_f32 {P(E)}, {P(Av.r)}, {P(Bv.r)} neg_hi:[0,1]')
        A(f'v_pk_add_f32 {P(O)}, {P(Av.r)}, {P(Bv.r)} neg_lo:[0,1]')
        T = cx.cmul(O, V(O), P(TP[k3]))
        Pv = cx.addq(Av.r, V(E), T, 3)
        Qv = cx.addq(Bv.r, V(E), T, 1)
        Y1 = cx.cmul(Pv.r, Pv, P(W1[k3]))
        Y2 = cx.cmul(Qv.r, Qv, P(W2[k3]), conj=True)
        S1 = cx.addq(E, Y1, Y2, 0)
        D1 = cx.addq(O, Y1, Y2, 2)
        U = cx.cmul(O, D1, P(TP[k3]), conj=True)
        z1[k3] = cx.addq(Av.r, S1, U, 1)
        A(f'v_pk_add_f32 {P(Bv.r)}, {P(E)}, {P(O)} op_sel:[0,1] op_sel_hi:[1,0] neg_hi:[1,0]')
        z2[7-k3] = V(Bv.r)
        pool.put(E); pool.put(O)
    A.stamp(5)
    for (z, ad) in ((z1, 22), (z2, 26)):
        y = cx.dft(z, +1, consts)
        for n3 in range(8):
            v = cx.resolve(y[n3])
            A(f'ds_write_b64 v{ad+3}, {P(v.r)} offset:{n3*8}')
            if v.r >= 176: pool.put(v.r)
    X = []
    for ad in (22, 26):
        x = []
        for k2 in range(8):
            r = pool.get()
            A(f'ds_read_b64 {P(r)}, v{ad+2} offset:{k2*8*PB*8}')
            x.append(V(r))
        X.append(x)
    for ri, ad in enumerate((22, 26)):
        A('s_waitcnt lgkmcnt(8)')
        x = X[ri]
        for k2 in range(8):
            if k2: x[k2] = cx.cmul(x[k2].r, x[k2], P(T2[k2]), conj=True)
            elif ri == 1: x[k2] = cx.cmul(x[k2].r, x[k2], P(T8), conj=True)
        y = cx.dft(x, +1, consts)
        for n2 in range(8):
            v = cx.resolve(y[n2])
            A(f'ds_write_b64 v{ad+1}, {P(v.r)} offset:{n2*64}')
            pool.put(v.r)
    X = []
    for ad in (22, 26):
        x = []
        for k1 in range(8):
            r = pool.get()
            A(f'ds_read_b64 {P(r)}, v{ad} offset:{k1*KS*8}')
            x.append(V(r))
        X.append(x)
    for ri, ad in enumerate((22, 26)):
        A('s_waitcnt lgkmcnt(8)')
        x = X[ri]
        for k1 in range(1, 8):
            x[k1] = cx.cmul(x[k1].r, x[k1], P(T1[k1]), conj=True)
        y = cx.dft(x, +1, consts)
        for n1 in range(8):
            v = cx.resolve(y[n1])
            A(f'ds_write_b64 v{ad}, {P(v.r)} offset:{n1*512}')
            pool.put(v.r)
    A('s_waitcnt lgkmcnt(0)')
    A('s_barrier')
    A.stamp(6)
    for i in range(8):
        A(f'ds_read_b128 v[{ST+4*i}:{ST+4*i+3}], v4 offset:{512*i}')
    A(f's_mov_b32 s31, {ws_off}')
    for i in range(8):
        A(f's_waitcnt lgkmcnt({7-i})')
        A(f'buffer_store_dwordx4 v[{ST+4*i}:{ST+4*i+3}], v3, s[32:35], s31 offen')
        if i < 7: A(f"s_add_u32 s31, s31, {32*CFG['CPS']}")
    A.stamp(7)
    A('s_waitcnt vmcnt(0)')
    A.stamp(8)
    A.stamp_flush(11, 32, 0)
    A.label(f'L_{name}_end')
    A('s_endpgm')
    return 224
```

```python
from asmlib import *
from kA import srd, colpair
import math

US = 80
UCH = 96*US
KCH = 16656
KBASE = 4*UCH
TCH = 1312
TBASE = KBASE + 4*KCH
PCH = 2048
PBASE = TBASE + 4*TCH
LDS_B = PBASE + 4*PCH
OST = 264
OBASE = KBASE
LOG2E = math.log2(math.e)

def sigbase(s): return s*4160 + (8 if s else 0)

def gen_b(A, name):
    A.raw(f'.globl {name}\n.p2align 8\n.type {name},@function')
    A.label(name)
    A('s_cmp_ge_u32 s2, 256')
    A(f's_cbranch_scc1 L_{name}_end')
    A.stamp(0)
    A('s_mov_b32 s57, 0x4000000')
    A('s_load_dwordx16 s[64:79], s[0:1], 24')
    A('s_load_dwordx2 s[80:81], s[0:1], 96')
    colpair(A)
    A('v_lshrrev_b32 v1, 6, v0')
    A('s_nop 0')
    A('v_readfirstlane_b32 s30, v1')
    A('v_and_b32 v2, 63, v0')
    A('s_lshl_b32 s31, s16, 2')
    A('s_add_u32 s31, s31, s30')
    A('s_waitcnt lgkmcnt(0)')
    srd(A, 4, 64, 4194304)
    srd(A, 8, 66, 262144)
    srd(A, 12, 68, 262144)
    srd(A, 20, 70, 262144)
    srd(A, 24, 72, 262144)
    srd(A, 32, 74, 2048)
    srd(A, 36, 76, 2048)
    srd(A, 40, 78, 8388608)
    srd(A, 44, 80, 268435456)
    A('v_lshlrev_b32 v3, 2, v2')
    A('s_lshl_b32 s48, s31, 8')
    A('s_lshl_b32 s49, s31, 1')
    A('v_mov_b32 v4, 0')
    A('buffer_load_dword v10, v3, s[8:11], s48 offen')
    A('buffer_load_dword v11, v3, s[12:15], s48 offen')
    A('buffer_load_dword v12, v3, s[20:23], s48 offen')
    A('buffer_load_dword v13, v3, s[24:27], s48 offen')
    A('buffer_load_ushort v14, v4, s[32:35], s49 offen')
    A('buffer_load_ushort v15, v4, s[36:39], s49 offen')
    A('v_lshlrev_b32 v5, 11, v0')
    A('s_lshl_b32 s50, s16, 3')
    UR = 200
    for it in range(8):
        A(f'buffer_load_dwordx2 v[{UR+2*it}:{UR+2*it+1}], v5, s[4:7], s50 offen')
        if it < 7: A('s_add_u32 s50, s50, 0x80000')
    A('v_mov_b32 v20, 0'); A('v_mov_b32 v21, 0'); A('v_mov_b32 v22, 0'); A('v_mov_b32 v23, 0')
    A('v_lshlrev_b32 v6, 4, v0')
    A('v_cmp_gt_u32 vcc, 160, v0')
    A('s_and_saveexec_b64 s[52:53], vcc')
    for c in range(4):
        A(f'ds_write_b128 v6, v[20:23] offset:{c*UCH}')
    A('s_mov_b64 exec, s[52:53]')
    A('s_waitcnt vmcnt(8)')
    A('v_lshlrev_b32 v14, 16, v14')
    A(f'v_mul_f32 v14, 0x{f2u(LOG2E):08x}, v14')
    A('v_exp_f32 v14, v14')
    A('v_lshlrev_b32 v15, 16, v15')
    A('v_cvt_pk_bf16_f32 v14, v14, v14')
    A('v_lshlrev_b32 v14, 16, v14')
    A(f's_mul_i32 s51, s30, {PCH}')
    A(f's_add_u32 s51, s51, {PBASE}')
    A('v_lshlrev_b32 v7, 5, v2')
    A('v_add_u32 v7, s51, v7')
    for e in range(2):
        o = 24 + 4*e
        if e == 0:
            for k in range(4): A(f'v_lshlrev_b32 v{o+k}, 16, v{10+k}')
        else:
            for k in range(4): A(f'v_and_b32 v{o+k}, 0xffff0000, v{10+k}')
        A(f'v_mul_f32 v{o}, 0x{f2u(LOG2E):08x}, v{o}')
        A(f'v_exp_f32 v{o}, v{o}')
        A(f'v_mul_f32 v{o+1}, v{o+1}, v14')
        A(f'v_cvt_pk_bf16_f32 v{o}, v{o}, v{o}')
        A(f'v_lshlrev_b32 v{o}, 16, v{o}')
        A(f'v_mul_f32 v{o}, v{o}, v14')
        A(f'v_mul_f32 v{o}, 0x{f2u(-LOG2E):08x}, v{o}')
        A(f'v_mul_f32 v{o+1}, 0x{f2u(1/(2*math.pi)):08x}, v{o+1}')
        A(f'v_mul_f32 v{o+2}, v{o+2}, v14')
        A(f'v_mul_f32 v{o+3}, v{o+3}, v14')
        A(f'v_add_f32 v{o+2}, v{o+2}, v{o+2}')
        A(f'v_add_f32 v{o+3}, v{o+3}, v{o+3}')
        A(f'ds_write_b128 v7, v[{o}:{o+3}] offset:{16*e}')
    A('v_lshrrev_b32 v8, 5, v0')
    A(f'v_mul_u32_u24 v8, {US}, v8')
    A('v_and_b32 v9, 24, v0')
    A('v_and_b32 v16, 7, v0')
    A('v_sub_u32 v16, 7, v16')
    A('v_add_u32 v9, v9, v16')
    A('v_lshl_add_u32 v8, v9, 1, v8')
    A(f'v_add_u32 v8, {32*US}, v8')
    for it in range(8):
        A(f's_waitcnt vmcnt({7-it})')
        for c in range(4):
            op = 'ds_write_b16' if c % 2 == 0 else 'ds_write_b16_d16_hi'
            A(f'{op} v8, v{UR+2*it+c//2} offset:{c*UCH + it*8*US}')
    A.stamp(1)
    A('v_and_b32 v16, 15, v2')
    A('v_lshrrev_b32 v17, 4, v2')
    A('v_cvt_f32_u32 v18, v16')
    A('v_mul_f32 v19, 16.0, v18' if False else f'v_mul_f32 v19, 0x{f2u(16.0):08x}, v18')
    A('v_cmp_eq_u32 s[54:55], 0, v16')
    A(f'v_mov_b32 v20, 0x{f2u(256.0):08x}')
    A('s_nop 0')
    A('v_cndmask_b32 v19, v19, v20, s[54:55]')
    A('v_lshlrev_b32 v21, 6, v17')
    A('v_add_u32 v21, s51, v21')
    ACC = [32 + 4*h for h in range(4)]
    for r in range(32, 48): A(f'v_mov_b32 v{r}, 0')
    GF = [48 + 4*h for h in range(4)]
    EF = [64 + 4*h for h in range(4)]
    PR = 80
    pool = Pool(96, 16)
    cx = Cx(A, pool)
    A('s_waitcnt lgkmcnt(0)')
    A('s_mov_b32 s56, 0')
    A.label(f'L_{name}_kg')
    for q in range(4):
        A(f'ds_read_b128 v[{PR+4*q}:{PR+4*q+3}], v21 offset:{16*q}')
    A('v_add_u32 v21, 256, v21')
    for q in range(4):
        A(f's_waitcnt lgkmcnt({3-q})')
        p = PR + 4*q
        E = pool.get(); F = pool.get(); t = pool.get()
        for (Z, fl) in ((E, 18), (F, 19)):
            A(f'v_mul_f32 v{t}, v{p}, v{fl}')
            A(f'v_mul_f32 v{t+1}, v{p+1}, v{fl}')
            A(f'v_exp_f32 v{t}, v{t}')
            A(f'v_fract_f32 v{t+1}, v{t+1}')
            A(f'v_cos_f32 v{Z}, v{t+1}')
            A(f'v_sin_f32 v{Z+1}, v{t+1}')
            A('s_nop 0')
            A(f'v_pk_mul_f32 {P(Z)}, {P(Z)}, {P(t)} op_sel_hi:[1,0]')
        for h in range(4):
            A(f'v_cvt_pk_bf16_f32 v{EF[h]+q}, v{E}, v{E+1}')
            G = cx.cmul(t, V(F), P(p+2))
            if h == 0:
                A(f'v_cndmask_b32 v{t}, v{t}, v{p+2}, s[54:55]')
                A(f'v_cndmask_b32 v{t+1}, v{t+1}, v{p+3}, s[54:55]')
            A(f'v_cvt_pk_bf16_f32 v{GF[h]+q}, v{t}, -v{t+1}')
            if h < 3:
                for Z in (E, F):
                    t2 = pool.get()
                    A(f'v_pk_mul_f32 {P(t2)}, {P(Z)}, {P(Z)} op_sel:[0,0] op_sel_hi:[0,1]')
                    A(f'v_pk_fma_f32 {P(Z)}, {P(Z)}, {P(Z)}, {P(t2)} op_sel:[1,1,0] op_sel_hi:[0,1,1] neg_lo:[0,1,0]')
                    pool.put(t2)
        pool.put(E); pool.put(F); pool.put(t)
    A('s_nop 1')
    for h in range(4):
        A(f'v_mfma_f32_16x16x32_bf16 v[{ACC[h]}:{ACC[h]+3}], v[{GF[h]}:{GF[h]+3}], v[{EF[h]}:{EF[h]+3}], v[{ACC[h]}:{ACC[h]+3}]')
    A('s_add_u32 s56, s56, 1')
    A('s_cmp_lt_u32 s56, 8')
    A(f's_cbranch_scc1 L_{name}_kg')
    A('s_nop 7'); A('s_nop 3')
    A.stamp(2)
    A(f's_mul_i32 s58, s30, {TCH}')
    A(f's_add_u32 s58, s58, {TBASE}')
    A('v_lshlrev_b32 v22, 6, v17')
    A('v_lshlrev_b32 v22, 1, v22')
    A('v_lshl_add_u32 v22, v16, 1, v22')
    A('v_add_u32 v22, s58, v22')
    for h in range(4):
        for r in range(4):
            A(f'v_cvt_pk_bf16_f32 v{ACC[h]+r}, v{ACC[h]+r}, v{ACC[h]+r}')
    for r in range(4):
        A(f'ds_write_b16 v22, v{ACC[0]+r} offset:{32*r}')
    A('s_mov_b32 exec_lo, 0')
    for h in range(1, 4):
        for r in range(4):
            A(f'ds_write_b16 v22, v{ACC[h]+r} offset:{32*r + 256*h}')
    A('s_mov_b64 exec, 1')
    A(f'ds_write_b16 v22, v{ACC[3]} offset:1280')
    A('s_mov_b64 exec, -1')
    A(f's_mul_i32 s59, s30, {KCH}')
    A(f's_add_u32 s59, s59, {KBASE}')
    A('v_lshlrev_b32 v23, 3, v2')
    A('v_add_u32 v23, s59, v23')
    A('v_lshlrev_b32 v24, 2, v2')
    A('s_waitcnt lgkmcnt(0)')
    G0 = 100
    for it in range(9):
        for e in range(4):
            r = (G0 if e % 2 == 0 else 140) + 2*it + e//2
            mb = 256*it - 32 + e
            if it == 0:
                A(f'v_add_u32 v25, {mb}, v24')
                A('v_max_i32 v25, 0, v25')
                A('v_lshl_add_u32 v25, v25, 1, s58')
            else:
                A(f'v_add_u32 v25, {mb}, v24')
                if it == 8: A('v_min_u32 v25, 2047, v25')
                A('v_cvt_f32_u32 v25, v25')
                A('v_cvt_pk_bf16_f32 v25, v25, v25')
                A('v_and_b32 v25, 0xffff, v25')
                A('v_lshl_add_u32 v25, v25, 1, s58')
            off = 0 if it == 0 else 0
            op = 'ds_read_u16_d16' if e % 2 == 0 else 'ds_read_u16_d16_hi'
            if it == 0:
                A(f'{op} v{r}, v25')
            else:
                A(f'v_subrev_u32 v25, {2*(0x4380-256)}, v25')
                A(f'{op} v{r}, v25')
    A('s_waitcnt lgkmcnt(0)')
    for r in range(18): A(f'v_or_b32 v{G0+r}, v{G0+r}, v{140+r}')
    A('v_cmp_gt_u32 vcc, 8, v2')
    A('s_nop 1')
    A(f'v_cndmask_b32 v{G0}, v{G0}, 0, vcc' if False else f'v_cndmask_b32_e64 v{G0}, v{G0}, 0, vcc')
    A(f'v_cndmask_b32_e64 v{G0+1}, v{G0+1}, 0, vcc')
    for it in range(9):
        if it == 8:
            A('s_mov_b64 exec, 0xff')
        A(f'ds_write_b64 v23, v[{G0+2*it}:{G0+2*it+1}] offset:{512*it}')
    A('s_mov_b64 exec, -1')
    if getattr(A,'dbgK',False):
        A('v_lshlrev_b32 v26, 3, v2')
        A('s_mul_i32 s49, s31, 4608')
        A('s_add_u32 s49, s49, 0x8000000')
        for it in range(9):
            A(f'buffer_store_dwordx2 v[{G0+2*it}:{G0+2*it+1}], v26, s[44:47], s49 offen')
            A('s_add_u32 s49, s49, 512')
    H0 = 120
    for it in range(9):
        A(f'ds_read_b64 v[{H0+2*it}:{H0+2*it+1}], v23 offset:{512*it+8}')
    for it in range(9):
        A(f's_waitcnt lgkmcnt({8-it})')
        d0, d1, d2, d3 = G0+2*it, G0+2*it+1, H0+2*it, H0+2*it+1
        if it == 8: A('s_mov_b64 exec, 0x7f')
        A(f'v_alignbit_b32 v26, v{d1}, v{d0}, 16')
        A(f'v_alignbit_b32 v27, v{d2}, v{d1}, 16')
        A(f'v_mov_b32 v28, v27')
        A(f'v_alignbit_b32 v29, v{d3}, v{d2}, 16')
        A(f'ds_write_b64 v23, v[26:27] offset:{512*it + sigbase(1)}')
        A(f'ds_write2_b32 v23, v{d1}, v{d2} offset0:0 offset1:1' if False else f'v_mov_b32 v30, v{d1}')
        A(f'v_mov_b32 v31, v{d2}')
        A(f'ds_write_b64 v23, v[30:31] offset:{512*it + sigbase(2)}')
        A(f'ds_write_b64 v23, v[28:29] offset:{512*it + sigbase(3)}')
    A('s_mov_b64 exec, -1')
    A.stamp(3)
    A('v_and_b32 v16, 31, v2')
    A('v_lshrrev_b32 v17, 5, v2')
    A('v_add_u32 v18, 1, v16')
    A('v_and_b32 v18, 3, v18')
    A('v_mul_u32_u24 v19, 4160, v18')
    A('v_cmp_lt_u32 vcc, 0, v18')
    A('s_nop 1')
    A('v_cndmask_b32_e64 v20, 0, 8, vcc')
    A('v_add_u32 v19, v19, v20')
    A('v_lshlrev_b32 v20, 3, v17')
    A('v_sub_u32 v21, v16, v20')
    A('v_sub_u32 v21, v21, v18')
    A('v_add_u32 v21, 9, v21')
    A('v_lshl_add_u32 v19, v21, 1, v19')
    A('v_add_u32 v19, s59, v19')
    A(f's_mul_i32 s60, s30, {UCH}' if False else f's_mul_i32 s48, s30, {UCH}')
    A(f'v_mul_u32_u24 v20, {US}, v16')
    A('v_lshl_add_u32 v20, v17, 4, v20')
    A(f'v_add_u32 v20, {US}, v20')
    A('v_add_u32 v20, s48, v20')
    C0 = 32; C1 = 48
    for r in range(32, 64): A(f'v_mov_b32 v{r}, 0')
    A('s_waitcnt lgkmcnt(0)')
    A('s_barrier')
    steps = [(m, h) for m in range(64) for h in range(2)]
    NB = 4
    FR = 64
    def issue(k):
        m, h = steps[k]; s = k % NB; b = FR + 12*s
        sp = 2*m - h
        A(f'ds_read_b64 v[{b}:{b+1}], v19 offset:{32*(sp+1)}')
        A(f'ds_read_b64 v[{b+2}:{b+3}], v19 offset:{32*(sp+1)+8}')
        n = 2
        if m < 32:
            A(f'ds_read_b128 v[{b+4}:{b+7}], v20 offset:{(-m+31)*US + 32*h}'); n += 1
        A(f'ds_read_b128 v[{b+8}:{b+11}], v20 offset:{(32-m+31)*US + 32*h}'); n += 1
        return n
    cnt = []
    for k in range(NB-1): cnt.append(issue(k))
    for k in range(len(steps)):
        if k + NB - 1 < len(steps): cnt.append(issue(k+NB-1))
        pend = sum(cnt[k+1:])
        A(f's_waitcnt lgkmcnt({min(pend,15)})')
        m, h = steps[k]; b = FR + 12*(k % NB)
        if m < 32:
            A(f'v_mfma_f32_32x32x16_bf16 v[{C0}:{C0+15}], v[{b}:{b+3}], v[{b+4}:{b+7}], v[{C0}:{C0+15}]')
        A(f'v_mfma_f32_32x32x16_bf16 v[{C1}:{C1+15}], v[{b}:{b+3}], v[{b+8}:{b+11}], v[{C1}:{C1+15}]')
    A.stamp(4)
    A(f'v_mul_u32_u24 v21, {US}, v16')
    A('v_lshlrev_b32 v22, 3, v17')
    A('v_sub_u32 v21, v21, v22')
    A(f'v_add_u32 v21, {32*US+8}, v21')
    A('v_add_u32 v21, s48, v21')
    UE = 64
    for T in range(2):
        for q in range(4):
            A(f'ds_read_b64 v[{UE+8*T+2*q}:{UE+8*T+2*q+1}], v21 offset:{T*32*US + 16*q}')
    A(f'v_mul_u32_u24 v22, {OST}, v16')
    A('v_lshl_add_u32 v22, v17, 5, v22')
    A('s_lshl_b32 s49, s30, 1')
    A(f's_add_u32 s49, s49, {OBASE}')
    A('v_add_u32 v22, s49, v22')
    A('s_waitcnt lgkmcnt(0)')
    A('s_barrier')
    for T in range(2):
        C = C0 if T == 0 else C1
        for q in range(4):
            ur = UE + 8*T + 2*q
            for e in range(4):
                pos = 3 - e
                src = ur + pos//2
                if pos % 2 == 0: A(f'v_lshlrev_b32 v24, 16, v{src}')
                else: A(f'v_and_b32 v24, 0xffff0000, v{src}')
                A('v_mul_f32 v24, v24, v15')
                A(f'v_cvt_pk_bf16_f32 v24, v24, v{C+4*q+e}')
                A('v_lshlrev_b32 v25, 16, v24')
                A('v_and_b32 v24, 0xffff0000, v24')
                A('v_add_f32 v24, v24, v25')
                A('v_cvt_pk_bf16_f32 v24, v24, v24')
                A(f'ds_write_b16 v22, v24 offset:{T*32*OST + (8*q+e)*8}')
    A('s_waitcnt lgkmcnt(0)')
    A('s_barrier')
    A('v_lshrrev_b32 v8, 5, v0')
    A(f'v_mul_u32_u24 v8, {OST}, v8')
    A('v_and_b32 v9, 31, v0')
    A('v_lshl_add_u32 v8, v9, 3, v8')
    A(f'v_add_u32 v8, {OBASE}, v8')
    for it in range(8):
        A(f'ds_read_b64 v[{UR+2*it}:{UR+2*it+1}], v8 offset:{it*8*OST}')
    A('v_lshlrev_b32 v5, 12, v0')
    A('s_lshl_b32 s50, s16, 3')
    A('s_add_u32 s50, s50, 2048')
    for it in range(8):
        A(f's_waitcnt lgkmcnt({7-it})')
        A(f'buffer_store_dwordx2 v[{UR+2*it}:{UR+2*it+1}], v5, s[40:43], s50 offen')
        if it < 7: A('s_add_u32 s50, s50, 0x100000')
    A.stamp(5)
    A.stamp_flush(6, 44, 0)
    A.label(f'L_{name}_end')
    A('s_endpgm')
    return 216
```

```python
import sys
from asmlib import *
import kA, kA2, kB
from build import finish
kA.CFG['CPS']=33024; kA.CFG['XMAP']=1
A = Asm()
v1 = kA.gen_p1(A, 'p1_kernel', 0)
v2 = kA2.gen_p2(A, 'p2_kernel', 0)
v3 = kA.gen_p3(A, 'p3_kernel', 0)
vb = kB.gen_b(A, 'b_kernel')
finish(A, [('p1_kernel', 256, 256, kA.LDS_P1, v1), ('p2_kernel', 257, 256, kA2.LDS_P2, v2), ('p3_kernel', 256, 256, kA.LDS_P1, v3), ('b_kernel', 256, 256, kB.LDS_B, vb)], sys.argv[1])
```

```python
import math, struct

def f2u(x):
    return struct.unpack('<I', struct.pack('<f', x))[0]

class Asm:
    def __init__(self):
        self.lines = []
    def __call__(self, s):
        self.lines.append('    ' + s)
    def label(self, s):
        self.lines.append(s + ':')
    def raw(self, s):
        self.lines.append(s)
    def comment(self, s):
        self.lines.append('    ; ' + s)
    def stamp(self, k):
        if getattr(self, 'stamps', False):
            self.lines.append(f'    s_memtime s[{60+2*k}:{61+2*k}]')
            if k == 0: self.lines.append('    s_memrealtime s[90:91]')
    def stamp_flush(self, n, srd, off):
        if not getattr(self, 'stamps', False): return
        A = self
        A('s_waitcnt lgkmcnt(0) vmcnt(0)')
        A('v_lshrrev_b32 v1, 6, v0')
        A('s_lshl_b32 s58, s2, 4')
        A('v_add_u32 v1, s58, v1')
        A('v_lshlrev_b32 v1, 6, v1')
        A('s_memrealtime s[92:93]')
        A('s_waitcnt lgkmcnt(0)')
        A('v_mov_b32 v2, s90')
        A(f'buffer_store_dword v2, v1, s[{srd}:{srd+3}], s57 offen offset:56')
        A('v_mov_b32 v2, s92')
        A(f'buffer_store_dword v2, v1, s[{srd}:{srd+3}], s57 offen offset:60')
        for k in range(n):
            A(f's_sub_u32 s59, s{60+2*k}, s60')
            A('v_mov_b32 v2, s59')
            A(f'buffer_store_dword v2, v1, s[{srd}:{srd+3}], s57 offen offset:{4*k}')
    def text(self):
        return '\n'.join(self.lines) + '\n'

class Pool:
    def __init__(self, start, n):
        assert start % 2 == 0
        self.free = [start + 2*i for i in range(n)]
        self.hi = start
    def get(self):
        r = self.free.pop(0)
        self.hi = max(self.hi, r+2)
        return r
    def put(self, r):
        assert r not in self.free
        self.free.append(r)

def P(r):
    return f'v[{r}:{r+1}]'

PADD_MODS = {0: '', 1: ' op_sel:[0,1] op_sel_hi:[1,0] neg_lo:[0,1]',
             2: ' neg_lo:[0,1] neg_hi:[0,1]', 3: ' op_sel:[0,1] op_sel_hi:[1,0] neg_hi:[0,1]'}

class V:
    __slots__ = ('r', 'rot')
    def __init__(self, r, rot=0):
        self.r = r; self.rot = rot % 4

class Cx:
    def __init__(self, A, pool):
        self.A = A; self.pool = pool
    def addq(self, d, a, b, q):
        qq = (b.rot + q - a.rot) % 4
        self.A(f'v_pk_add_f32 {P(d)}, {P(a.r)}, {P(b.r)}{PADD_MODS[qq]}')
        return V(d, a.rot)
    def cmul(self, d, x, w, conj=False):
        t = self.pool.get()
        self.A(f'v_pk_mul_f32 {P(t)}, {P(x.r)}, {w} op_sel:[0,0] op_sel_hi:[1,0]')
        neg = 'neg_hi:[0,1,0]' if conj else 'neg_lo:[0,1,0]'
        self.A(f'v_pk_fma_f32 {P(d)}, {P(x.r)}, {w}, {P(t)} op_sel:[1,1,0] op_sel_hi:[0,1,1] {neg}')
        self.pool.put(t)
        return V(d, x.rot)
    def resolve(self, x):
        if x.rot == 0: return x
        m = {1: 'op_sel:[1,0] op_sel_hi:[0,0] neg_lo:[1,0]', 2: 'neg_lo:[1,0] neg_hi:[1,0] op_sel_hi:[1,0]', 3: 'op_sel:[1,0] op_sel_hi:[0,0] neg_hi:[1,0]'}[x.rot]
        t = self.pool.get()
        self.A(f'v_pk_mul_f32 {P(t)}, {P(x.r)}, 1.0 {m}')
        self.pool.put(x.r)
        return V(t, 0)
    def bfly2(self, a, b):
        t = self.pool.get()
        y1 = self.addq(t, a, b, 2)
        y0 = self.addq(a.r, a, b, 0)
        self.pool.put(b.r)
        return [y0, y1]
    def bfly4(self, x, sign):
        a, b, c, d = x
        t = self.pool.get()
        t1 = self.addq(t, a, c, 2)
        t0 = self.addq(a.r, a, c, 0)
        t3 = self.addq(c.r, b, d, 2)
        t2 = self.addq(b.r, b, d, 0)
        y2 = self.addq(d.r, t0, t2, 2)
        y0 = self.addq(t0.r, t0, t2, 0)
        q = 3 if sign < 0 else 1
        y1 = self.addq(t2.r, t1, t3, q)
        y3 = self.addq(t1.r, t1, t3, (q+2) % 4)
        self.pool.put(t3.r)
        return [y0, y1, y2, y3]
    def dft(self, x, sign, consts):
        R = len(x)
        if R == 2: return self.bfly2(*x)
        if R == 4: return self.bfly4(x, sign)
        R1, R2 = {8: (2, 4), 16: (4, 4)}[R]
        mid = [[None]*R2 for _ in range(R1)]
        for n2 in range(R2):
            y = self.dft([x[n1*R2+n2] for n1 in range(R1)], sign, consts)
            for k1 in range(R1):
                e = (n2*k1*(16//R)) % 16
                v = y[k1]
                quad, rem = e // 4, e % 4
                if rem:
                    v = self.cmul(v.r, v, consts[rem], conj=(sign > 0))
                v = V(v.r, v.rot + (3*quad if sign < 0 else quad))
                mid[k1][n2] = v
        out = [None]*R
        for k1 in range(R1):
            y = self.dft(mid[k1], sign, consts)
            for k2 in range(R2):
                out[k1 + R1*k2] = y[k2]
        return out

def emit_w16_consts(A, sbase):
    c = {}
    for k in (1, 2, 3):
        A(f's_mov_b32 s{sbase+2*(k-1)}, 0x{f2u(math.cos(2*math.pi*k/16)):08x}')
        A(f's_mov_b32 s{sbase+2*(k-1)+1}, 0x{f2u(-math.sin(2*math.pi*k/16)):08x}')
        c[k] = f's[{sbase+2*(k-1)}:{sbase+2*(k-1)+1}]'
    return c

G128 = [list(range(0,4))+list(range(12,16))+list(range(20,28)), list(range(4,12))+list(range(16,20))+list(range(28,32))]
G128 = G128 + [[l+32 for l in g] for g in G128]
def conflicts(kind, addrs):
    if kind == 'r64': groups = [range(0,32), range(32,64)]; nb = 64; nd = 2
    elif kind == 'r128': groups = G128; nb = 64; nd = 4
    elif kind == 'r32': groups = [range(0,32), range(32,64)]; nb = 32; nd = 1
    elif kind == 'w64': groups = [range(16*i,16*i+16) for i in range(4)]; nb = 32; nd = 2
    elif kind == 'w128': groups = [range(8*i,8*i+8) for i in range(8)]; nb = 32; nd = 4
    elif kind == 'w32': groups = [range(0,32), range(32,64)]; nb = 32; nd = 1
    tot = 0
    for g in groups:
        banks = {}
        for l in g:
            for d in range(nd):
                dw = addrs[l]//4 + d
                banks.setdefault(dw % nb, set()).add(dw)
        tot += max(len(s) for s in banks.values())
    return tot, len(groups)
```

```python
from asmlib import *

CS1 = 2312; K1S = 144
CFG = dict(CPS=32768, XMAP=1)
P2P = 10; CS2 = 2576
LDS_P1 = max(2*CS1, 2*CS2)*8

def srd(A, s, ptr, nbytes):
    A(f's_mov_b32 s{s}, s{ptr}')
    A(f's_mov_b32 s{s+1}, s{ptr+1}')
    A(f's_mov_b32 s{s+2}, {nbytes}')
    A(f's_mov_b32 s{s+3}, 0x00020000')

def gen_tw(A, base, R, dst):
    for k in range(1, R):
        d = dst[k]
        if k == 1:
            A(f'v_cos_f32 v{d}, v{base}')
            A(f'v_sin_f32_e64 v{d+1}, -v{base}')
        else:
            A(f'v_mul_f32 v{d+1}, 0x{f2u(float(k)):08x}, v{base}')
            A(f'v_cos_f32 v{d}, v{d+1}')
            A(f'v_sin_f32_e64 v{d+1}, -v{d+1}')

def colpair(A):
    if CFG['XMAP'] == 1:
        A('s_and_b32 s16, s2, 7')
        A('s_lshl_b32 s16, s16, 5')
        A('s_lshr_b32 s17, s2, 3')
        A('s_add_u32 s16, s16, s17')
    elif CFG['XMAP'] == 0:
        A('s_mov_b32 s16, s2')
    elif CFG['XMAP'] == 2:
        A('s_and_b32 s16, s2, 7')
        A('s_lshr_b32 s17, s2, 3')
        A('s_and_b32 s18, s17, 15')
        A('s_lshr_b32 s17, s17, 4')
        A('s_lshl_b32 s17, s17, 3')
        A('s_add_u32 s16, s16, s17')
        A('s_lshl_b32 s16, s16, 4')
        A('s_add_u32 s16, s16, s18')

def gen_p1(A, name, ws_off):
    A.raw(f'.globl {name}\n.p2align 8\n.type {name},@function')
    A.label(name)
    A('s_cmp_ge_u32 s2, 256')
    A(f's_cbranch_scc1 L_{name}_end')
    A.stamp(0)
    A('s_mov_b32 s57, 0x4100000')
    A('s_load_dwordx2 s[4:5], s[0:1], 0')
    A('s_load_dwordx2 s[6:7], s[0:1], 96')
    colpair(A)
    A('v_and_b32 v1, 1, v0')
    A('v_lshrrev_b32 v2, 1, v0')
    A('v_lshlrev_b32 v3, 11, v2')
    A('v_lshl_add_u32 v3, v1, 2, v3')
    A('s_lshl_b32 s17, s16, 3')
    consts = emit_w16_consts(A, 20)
    A('s_waitcnt lgkmcnt(0)')
    srd(A, 8, 4, 4194304)
    srd(A, 12, 6, 268435456)
    RAW = 80
    for n1 in range(16):
        A(f'buffer_load_dword v{RAW+n1}, v3, s[8:11], s17 offen')
        if n1 < 15: A('s_add_u32 s17, s17, 0x40000')
    TW = {k: 40 + 2*k for k in range(16)}
    A('v_cvt_f32_u32 v4, v2')
    A(f'v_mul_f32 v4, 0x{f2u(1/2048):08x}, v4')
    gen_tw(A, 4, 16, TW)
    A(f'v_mul_u32_u24 v5, {CS1}, v1')
    A('v_add_u32 v5, v5, v2')
    A('v_lshlrev_b32 v5, 3, v5')
    A('v_lshrrev_b32 v6, 3, v2')
    A('v_and_b32 v7, 7, v2')
    A(f'v_mul_u32_u24 v8, {K1S}, v6')
    A(f'v_mul_u32_u24 v9, {CS1}, v1')
    A('v_add3_u32 v8, v8, v9, v7')
    A('v_lshlrev_b32 v8, 3, v8')
    A(f'v_mul_u32_u24 v9, {CS2}, v1')
    A(f'v_mul_u32_u24 v10, {P2P}, v6')
    A('v_add3_u32 v10, v10, v9, v7')
    A('v_lshlrev_b32 v10, 3, v10')
    A(f'v_mul_u32_u24 v11, {P2P}, v2')
    A('v_add_u32 v11, v11, v9')
    A('v_lshlrev_b32 v11, 3, v11')
    A('v_cvt_f32_u32 v12, v7')
    A(f'v_mul_f32 v12, 0x{f2u(1/128):08x}, v12')
    pool = Pool(100, 20)
    cx = Cx(A, pool)
    x = []
    A.stamp(1)
    for n1 in range(16):
        A(f's_waitcnt vmcnt({15-n1})')
        r = pool.get()
        A(f'v_lshlrev_b32 v{r}, 16, v{RAW+n1}')
        A(f'v_and_b32 v{r+1}, 0xffff0000, v{RAW+n1}')
        x.append(V(r))
    A.stamp(2)
    y = cx.dft(x, -1, consts)
    for k1 in range(16):
        v = y[k1]
        if k1: v = cx.cmul(v.r, v, P(TW[k1]))
        v = cx.resolve(v)
        A(f'ds_write_b64 v5, {P(v.r)} offset:{k1*K1S*8}')
        pool.put(v.r)
    gen_tw(A, 12, 16, TW)
    A('s_waitcnt lgkmcnt(0)')
    A('s_barrier')
    x = []
    for n2 in range(16):
        r = pool.get()
        A(f'ds_read_b64 {P(r)}, v8 offset:{n2*64}')
        x.append(V(r))
    A('s_waitcnt lgkmcnt(0)')
    A('s_barrier')
    y = cx.dft(x, -1, consts)
    for k2 in range(16):
        v = y[k2]
        if k2: v = cx.cmul(v.r, v, P(TW[k2]))
        v = cx.resolve(v)
        A(f'ds_write_b64 v10, {P(v.r)} offset:{k2*16*P2P*8}')
        pool.put(v.r)
    A('s_waitcnt lgkmcnt(0)')
    A('s_barrier')
    A.stamp(3)
    base = 40
    for k2hi in range(2):
        for q in range(4):
            r = base + (k2hi*8 + 2*q)*2
            A(f'ds_read_b128 v[{r}:{r+3}], v11 offset:{(k2hi*128*P2P + 2*q)*8}')
    A('v_lshlrev_b32 v13, 3, v0')
    A(f"s_mul_i32 s18, s16, {CFG['CPS']}")
    A(f's_add_u32 s18, s18, {ws_off}')
    for k2hi in range(2):
        A(f's_waitcnt lgkmcnt({4*(1-k2hi)})')
        x = [V(base + (k2hi*8+n3)*2) for n3 in range(8)]
        y = cx.dft(x, -1, consts)
        for k3 in range(8):
            v = cx.resolve(y[k3])
            rho = k2hi + 2*k3
            A(f's_add_u32 s19, s18, {rho*2048}')
            A(f'buffer_store_dwordx2 {P(v.r)}, v13, s[12:15], s19 offen')
    A.stamp(4)
    A('s_waitcnt vmcnt(0)') if getattr(A,'stamps',False) else None
    A.stamp(5)
    A.stamp_flush(6, 12, 0)
    A.label(f'L_{name}_end')
    A('s_endpgm')
    return 144

def gen_p3(A, name, ws_off, scale=None):
    A.raw(f'.globl {name}\n.p2align 8\n.type {name},@function')
    A.label(name)
    A('s_cmp_ge_u32 s2, 256')
    A(f's_cbranch_scc1 L_{name}_end')
    A.stamp(0)
    A('s_mov_b32 s57, 0x4200000')
    A('s_load_dwordx2 s[4:5], s[0:1], 80')
    A('s_load_dwordx2 s[6:7], s[0:1], 96')
    colpair(A)
    A('v_and_b32 v1, 1, v0')
    A('v_lshrrev_b32 v2, 1, v0')
    consts = emit_w16_consts(A, 20)
    A('v_lshlrev_b32 v13, 3, v0')
    A(f"s_mul_i32 s18, s16, {CFG['CPS']}")
    A(f's_add_u32 s18, s18, {ws_off}')
    A('s_waitcnt lgkmcnt(0)')
    srd(A, 8, 4, 8388608)
    srd(A, 12, 6, 268435456)
    base = 100
    for k2hi in range(2):
        for k3 in range(8):
            rho = k2hi + 2*k3
            r = base + (k2hi*8+k3)*2
            A(f's_add_u32 s19, s18, {rho*2048}')
            A(f'buffer_load_dwordx2 {P(r)}, v13, s[12:15], s19 offen')
    TW = {k: 40 + 2*k for k in range(16)}
    A('v_cvt_f32_u32 v4, v2')
    A(f'v_mul_f32 v4, 0x{f2u(1/2048):08x}, v4')
    A(f'v_mul_u32_u24 v5, {CS1}, v1')
    A('v_add_u32 v5, v5, v2')
    A('v_lshlrev_b32 v5, 3, v5')
    A('v_lshrrev_b32 v6, 3, v2')
    A('v_and_b32 v7, 7, v2')
    A(f'v_mul_u32_u24 v8, {K1S}, v6')
    A(f'v_mul_u32_u24 v9, {CS1}, v1')
    A('v_add3_u32 v8, v8, v9, v7')
    A('v_lshlrev_b32 v8, 3, v8')
    A(f'v_mul_u32_u24 v9, {CS2}, v1')
    A(f'v_mul_u32_u24 v10, {P2P}, v6')
    A('v_add3_u32 v10, v10, v9, v7')
    A('v_lshlrev_b32 v10, 3, v10')
    A(f'v_mul_u32_u24 v11, {P2P}, v2')
    A('v_add_u32 v11, v11, v9')
    A('v_lshlrev_b32 v11, 3, v11')
    A('v_cvt_f32_u32 v12, v7')
    A(f'v_mul_f32 v12, 0x{f2u(1/128):08x}, v12')
    gen_tw(A, 12, 16, TW)
    A.stamp(1)
    pool = Pool(14, 12)
    cx = Cx(A, pool)
    for k2hi in range(2):
        A(f's_waitcnt vmcnt({8*(1-k2hi)})')
        x = [V(base + (k2hi*8+k3)*2) for k3 in range(8)]
        y = cx.dft(x, +1, consts)
        for n3 in range(8):
            v = cx.resolve(y[n3])
            A(f'ds_write_b64 v11, {P(v.r)} offset:{(k2hi*128*P2P + n3)*8}')
            pool.put(v.r)
    A('s_waitcnt lgkmcnt(0)')
    A('s_barrier')
    A.stamp(2)
    x = []
    for k2 in range(16):
        r = pool.get()
        A(f'ds_read_b64 {P(r)}, v10 offset:{k2*16*P2P*8}')
        x.append(V(r))
    A('s_waitcnt lgkmcnt(0)')
    A('s_barrier')
    for k2 in range(1, 16):
        x[k2] = cx.cmul(x[k2].r, x[k2], P(TW[k2]), conj=True)
    y = cx.dft(x, +1, consts)
    for n2 in range(16):
        v = cx.resolve(y[n2])
        A(f'ds_write_b64 v8, {P(v.r)} offset:{n2*64}')
        pool.put(v.r)
    gen_tw(A, 4, 16, TW)
    A('s_waitcnt lgkmcnt(0)')
    A('s_barrier')
    x = []
    for k1 in range(16):
        r = pool.get()
        A(f'ds_read_b64 {P(r)}, v5 offset:{k1*K1S*8}')
        x.append(V(r))
    A('v_lshlrev_b32 v3, 12, v2')
    A('v_lshl_add_u32 v3, v1, 2, v3')
    A('s_lshl_b32 s17, s16, 3')
    A('s_waitcnt lgkmcnt(0)')
    for k1 in range(1, 16):
        x[k1] = cx.cmul(x[k1].r, x[k1], P(TW[k1]), conj=True)
    y = cx.dft(x, +1, consts)
    A.stamp(3)
    for n1 in range(16):
        v = cx.resolve(y[n1])
        if scale is not None:
            A(f'v_mul_f32 v{v.r}, 0x{f2u(scale):08x}, v{v.r}')
            A(f'v_mul_f32 v{v.r+1}, 0x{f2u(scale):08x}, v{v.r+1}')
        A(f'v_cvt_pk_bf16_f32 v{v.r}, v{v.r}, v{v.r+1}')
        A(f'buffer_store_dword v{v.r}, v3, s[8:11], s17 offen')
        if n1 < 15: A('s_add_u32 s17, s17, 0x80000')
    A.stamp(4)
    A('s_waitcnt vmcnt(0)') if getattr(A,'stamps',False) else None
    A.stamp(5)
    A.stamp_flush(6, 12, 0)
    A.label(f'L_{name}_end')
    A('s_endpgm')
    return 144
```

```python
from asmlib import *
from kA import srd, gen_tw

ZR_OFF = 0; ZP_OFF = 16<<20; WT_OFF = 32<<20; UT_OFF = 40<<20; KT_OFF = 48<<20; YT_OFF = 56<<20
WS_BYTES = 268435456
CPS = 32768
RS = 5232; KS = 72; PB = 10
TS2 = 144; TS3 = 80
LDS_ROW = 8*RS
K1S = 136; P2P = 10
CS1 = 16*K1S; CS2 = 256*P2P
LDS_COL = 2*CS2*8

def row_setup(A, T1, T2):
    A('v_cvt_f32_u32 v10, v6')
    A(f'v_mul_f32 v11, 0x{f2u(1/512):08x}, v10')
    gen_tw(A, 11, 8, T1)
    A('v_and_b32 v12, 7, v6')
    A('v_lshrrev_b32 v13, 3, v6')
    A('v_cvt_f32_u32 v14, v12')
    A(f'v_mul_f32 v15, 0x{f2u(1/64):08x}, v14')
    gen_tw(A, 15, 8, T2)
    A(f's_mul_i32 s40, s30, {2*RS}')
    A(f's_add_u32 s41, s40, {RS}')
    A('v_lshlrev_b32 v16, 3, v6')
    A(f'v_mul_u32_u24 v17, {KS}, v13')
    A('v_add_u32 v17, v17, v12')
    A('v_lshlrev_b32 v17, 3, v17')
    A(f'v_mul_u32_u24 v18, {PB}, v13')
    A('v_add_u32 v18, v18, v12')
    A('v_lshlrev_b32 v18, 3, v18')
    A(f'v_mul_u32_u24 v19, {PB*8}, v6')
    for (dst, sb) in ((22, 40), (26, 41)):
        A(f'v_add_u32 v{dst}, s{sb}, v16')
        A(f'v_add_u32 v{dst+1}, s{sb}, v17')
        A(f'v_add_u32 v{dst+2}, s{sb}, v18')
        A(f'v_add_u32 v{dst+3}, s{sb}, v19')

def wave_ids(A):
    A('v_lshrrev_b32 v5, 6, v0')
    A('s_nop 0')
    A('v_readfirstlane_b32 s30, v5')
    A('v_and_b32 v6, 63, v0')

def role_rowfwd(A, tag):
    A.stamp(0)
    A('s_load_dwordx2 s[4:5], s[0:1], 0')
    A('s_load_dwordx2 s[28:29], s[0:1], 96')
    consts = emit_w16_consts(A, 20)
    wave_ids(A)
    A('s_lshl_b32 s16, s2, 3')
    A('s_lshl_b32 s17, s30, 1')
    A('s_add_u32 s17, s17, s16')
    A('s_lshl_b32 s17, s17, 11')
    A('s_add_u32 s18, s17, 2048')
    A('v_lshlrev_b32 v7, 2, v6')
    A('s_waitcnt lgkmcnt(0)')
    srd(A, 8, 4, 4194304)
    srd(A, 32, 28, WS_BYTES)
    RAW = 90
    for ri, sr in enumerate((17, 18)):
        for n1 in range(8):
            A(f'buffer_load_dword v{RAW+8*ri+n1}, v7, s[8:11], s{sr} offen offset:{256*n1}')
    T1 = {k: 40 + 2*k for k in range(8)}
    T2 = {k: 56 + 2*k for k in range(8)}
    row_setup(A, T1, T2)
    A('v_lshrrev_b32 v30, 1, v6')
    A(f'v_mul_u32_u24 v30, {TS2}, v30')
    A('v_and_b32 v31, 1, v6')
    A('v_lshl_add_u32 v30, v31, 3, v30')
    A('s_lshl_b32 s42, s30, 5')
    A('v_add_u32 v30, s42, v30')
    A('v_and_b32 v1, 7, v0')
    A('v_lshrrev_b32 v2, 3, v0')
    A(f'v_mul_u32_u24 v4, {TS2}, v2')
    A('v_lshl_add_u32 v4, v1, 4, v4')
    A(f'v_mul_u32_u24 v3, {CPS}, v2')
    A('v_lshl_add_u32 v3, v1, 4, v3')
    pool = Pool(106, 22)
    cx = Cx(A, pool)
    A.stamp(1)
    for ri, ad in enumerate((22, 26)):
        A(f's_waitcnt vmcnt({8*(1-ri)})')
        x = []
        for n1 in range(8):
            r = pool.get()
            A(f'v_lshlrev_b32 v{r}, 16, v{RAW+8*ri+n1}')
            A(f'v_and_b32 v{r+1}, 0xffff0000, v{RAW+8*ri+n1}')
            x.append(V(r))
        y = cx.dft(x, -1, consts)
        for k1 in range(8):
            v = y[k1]
            if k1: v = cx.cmul(v.r, v, P(T1[k1]))
            v = cx.resolve(v)
            A(f'ds_write_b64 v{ad}, {P(v.r)} offset:{k1*KS*8}')
            pool.put(v.r)
    A.stamp(2)
    X = []
    for ad in (22, 26):
        x = []
        for n2 in range(8):
            r = pool.get()
            A(f'ds_read_b64 {P(r)}, v{ad+1} offset:{n2*64}')
            x.append(V(r))
        X.append(x)
    for ri, ad in enumerate((22, 26)):
        A('s_waitcnt lgkmcnt(8)')
        y = cx.dft(X[ri], -1, consts)
        for k2 in range(8):
            v = y[k2]
            if k2: v = cx.cmul(v.r, v, P(T2[k2]))
            v = cx.resolve(v)
            A(f'ds_write_b64 v{ad+2}, {P(v.r)} offset:{k2*8*PB*8}')
            pool.put(v.r)
    DA = 72; DB = 88
    for (ad, base) in ((22, DA), (26, DB)):
        for q in range(4):
            A(f'ds_read_b128 v[{base+4*q}:{base+4*q+3}], v{ad+3} offset:{16*q}')
    A('s_waitcnt lgkmcnt(4)')
    a = cx.dft([V(DA+2*n) for n in range(8)], -1, consts)
    A('s_waitcnt lgkmcnt(0)')
    b = cx.dft([V(DB+2*n) for n in range(8)], -1, consts)
    a = [cx.resolve(v) for v in a]; b = [cx.resolve(v) for v in b]
    A('s_barrier')
    for ri, z in enumerate((a, b)):
        for k3 in range(8):
            A(f'ds_write_b64 v30, {P(z[k3].r)} offset:{16*ri + k3*32*TS2}')
    A('s_waitcnt lgkmcnt(0)')
    A('s_barrier')
    A.stamp(3)
    ST = 40
    for i in range(8):
        A(f'ds_read_b128 v[{ST+4*i}:{ST+4*i+3}], v4 offset:{32*TS2*i}')
    A('s_lshl_b32 s31, s2, 7')
    A(f's_add_u32 s31, s31, {ZR_OFF}')
    for i in range(8):
        A(f's_waitcnt lgkmcnt({7-i})')
        A(f'buffer_store_dwordx4 v[{ST+4*i}:{ST+4*i+3}], v3, s[32:35], s31 offen')
        if i < 7: A(f's_add_u32 s31, s31, {32*CPS}')
    A.stamp(4)
    A.stamp_flush(5, 32, 0)
    A('s_endpgm')
    return 150

def role_rowinv(A, tag):
    A.stamp(0)
    A('s_load_dwordx2 s[4:5], s[0:1], 80')
    A('s_load_dwordx2 s[28:29], s[0:1], 96')
    consts = emit_w16_consts(A, 20)
    wave_ids(A)
    A('v_and_b32 v1, 3, v0')
    A('v_lshrrev_b32 v2, 2, v0')
    A('v_lshlrev_b32 v3, 14, v2')
    A('v_lshl_add_u32 v3, v1, 4, v3')
    A(f'v_mul_u32_u24 v4, {TS3}, v2')
    A('v_lshl_add_u32 v4, v1, 4, v4')
    A('s_lshl_b32 s31, s2, 6')
    A(f's_add_u32 s31, s31, {ZP_OFF}')
    A('s_waitcnt lgkmcnt(0)')
    srd(A, 8, 4, 8388608)
    srd(A, 32, 28, WS_BYTES)
    ST = 72
    for i in range(8):
        A(f'buffer_load_dwordx4 v[{ST+4*i}:{ST+4*i+3}], v3, s[32:35], s31 offen')
        if i < 7: A(f's_add_u32 s31, s31, {64*16384}')
    T1 = {k: 40 + 2*k for k in range(8)}
    T2 = {k: 56 + 2*k for k in range(8)}
    row_setup(A, T1, T2)
    A(f'v_mul_u32_u24 v30, {TS3}, v6')
    A('s_lshl_b32 s42, s30, 4')
    A('v_add_u32 v30, s42, v30')
    A.stamp(1)
    for i in range(8):
        A(f's_waitcnt vmcnt({7-i})')
        A(f'ds_write_b128 v4, v[{ST+4*i}:{ST+4*i+3}] offset:{64*TS3*i}')
    A('s_waitcnt lgkmcnt(0)')
    A('s_barrier')
    A.stamp(2)
    pool = Pool(104, 24)
    cx = Cx(A, pool)
    Z = []
    for ri in range(2):
        z = []
        for k3 in range(8):
            r = pool.get()
            A(f'ds_read_b64 {P(r)}, v30 offset:{8*ri + k3*64*TS3}')
            z.append(V(r))
        Z.append(z)
    A('s_waitcnt lgkmcnt(0)')
    A('s_barrier')
    for ri, ad in enumerate((22, 26)):
        y = cx.dft(Z[ri], +1, consts)
        for n3 in range(8):
            v = cx.resolve(y[n3])
            A(f'ds_write_b64 v{ad+3}, {P(v.r)} offset:{n3*8}')
            pool.put(v.r)
    X = []
    for ad in (22, 26):
        x = []
        for k2 in range(8):
            r = pool.get()
            A(f'ds_read_b64 {P(r)}, v{ad+2} offset:{k2*8*PB*8}')
            x.append(V(r))
        X.append(x)
    for ri, ad in enumerate((22, 26)):
        A('s_waitcnt lgkmcnt(8)')
        x = X[ri]
        for k2 in range(1, 8):
            x[k2] = cx.cmul(x[k2].r, x[k2], P(T2[k2]), conj=True)
        y = cx.dft(x, +1, consts)
        for n2 in range(8):
            v = cx.resolve(y[n2])
            A(f'ds_write_b64 v{ad+1}, {P(v.r)} offset:{n2*64}')
            pool.put(v.r)
    X = []
    for ad in (22, 26):
        x = []
        for k1 in range(8):
            r = pool.get()
            A(f'ds_read_b64 {P(r)}, v{ad} offset:{k1*KS*8}')
            x.append(V(r))
        X.append(x)
    A('s_lshl_b32 s16, s2, 3')
    A('s_lshl_b32 s17, s30, 1')
    A('s_add_u32 s17, s17, s16')
    A('s_lshl_b32 s17, s17, 12')
    A('s_add_u32 s18, s17, 4096')
    A('v_lshlrev_b32 v7, 2, v6')
    A.stamp(3)
    for ri, sr in enumerate((17, 18)):
        A(f's_waitcnt lgkmcnt({8*(1-ri)})')
        x = X[ri]
        for k1 in range(1, 8):
            x[k1] = cx.cmul(x[k1].r, x[k1], P(T1[k1]), conj=True)
        y = cx.dft(x, +1, consts)
        for n1 in range(8):
            v = cx.resolve(y[n1])
            A(f'v_cvt_pk_bf16_f32 v{v.r}, v{v.r}, v{v.r+1}')
            A(f'buffer_store_dword v{v.r}, v7, s[8:11], s{sr} offen offset:{256*n1}')
    A.stamp(4)
    A.stamp_flush(5, 32, 0)
    A('s_endpgm')
    return 152

def role_col(A, tag):
    A.stamp(0)
    A('s_load_dwordx2 s[28:29], s[0:1], 96')
    consts = emit_w16_consts(A, 20)
    A('v_lshrrev_b32 v1, 7, v0')
    A('v_and_b32 v2, 127, v0')
    A('s_nop 0')
    A('v_readfirstlane_b32 s30, v1')
    A('s_sub_u32 s16, 512, s2')
    A('s_and_b32 s17, s16, 511')
    A('s_cmp_eq_u32 s30, 0')
    A('s_cselect_b32 s18, s2, s17')
    A('s_lshr_b32 s19, s18, 1')
    A(f's_mul_i32 s19, s19, {CPS}')
    A('s_and_b32 s31, s18, 1')
    A('s_lshl_b32 s31, s31, 3')
    A('s_add_u32 s19, s19, s31')
    A(f's_add_u32 s19, s19, {ZR_OFF}')
    A('v_lshlrev_b32 v3, 4, v2')
    A('s_waitcnt lgkmcnt(0)')
    srd(A, 12, 28, WS_BYTES)
    pool = Pool(80, 30)
    cx = Cx(A, pool)
    x = []
    for n1 in range(16):
        r = pool.get()
        A(f'buffer_load_dwordx2 {P(r)}, v3, s[12:15], s19 offen offset:{(n1%2)*2048}')
        if n1 % 2 == 1 and n1 < 15: A('s_add_u32 s19, s19, 4096')
        x.append(V(r))
    WR1 = 140; WR2 = 148; WX = 20
    A('v_lshlrev_b32 v14, 2, v0')
    A('v_sub_u32 v15, 1024, v14')
    A('v_sub_u32 v16, 8192, v14')
    A('v_and_b32 v16, 8191, v16')
    A(f's_lshl_b32 s36, s2, 13')
    A(f's_add_u32 s36, s36, {WT_OFF}')
    A(f's_lshl_b32 s37, s16, 13')
    A(f's_add_u32 s37, s37, {WT_OFF}')
    A('s_add_u32 s38, s36, 4096')
    A('s_add_u32 s39, s37, 4096')
    for k3 in range(8):
        A(f'buffer_load_dword v{WR1+k3}, v14, s[12:15], s{36 if k3 < 4 else 38} offen offset:{1024*(k3%4)}')
    A(f'buffer_load_dword v{WR2}, v16, s[12:15], s37 offen')
    for k3 in range(1, 8):
        kk = 7 - k3
        A(f'buffer_load_dword v{WR2+k3}, v15, s[12:15], s{37 if kk < 4 else 39} offen offset:{1024*(kk%4)}')
    A('s_cmp_lg_u32 s2, 0')
    A(f's_cbranch_scc1 L_{tag}_nox')
    A(f'buffer_load_dword v{WX}, v16, s[12:15], s36 offen')
    for k3 in range(1, 8):
        kk = 7 - k3
        A(f'buffer_load_dword v{WX+k3}, v15, s[12:15], s{36 if kk < 4 else 38} offen offset:{1024*(kk%4)}')
    for k3 in range(8):
        A(f'buffer_load_dword v{WX+8+k3}, v14, s[12:15], s{37 if k3 < 4 else 39} offen offset:{1024*(k3%4)}')
    A.label(f'L_{tag}_nox')
    TW = {k: 40 + 2*k for k in range(16)}
    A('v_cvt_f32_u32 v4, v2')
    A(f'v_mul_f32 v4, 0x{f2u(1/2048):08x}, v4')
    gen_tw(A, 4, 16, TW)
    A(f'v_mul_u32_u24 v9, {CS1}, v1')
    A('v_add_u32 v5, v9, v2')
    A('v_lshlrev_b32 v5, 3, v5')
    A('v_lshrrev_b32 v6, 3, v2')
    A('v_and_b32 v7, 7, v2')
    A(f'v_mul_u32_u24 v8, {K1S}, v6')
    A('v_add3_u32 v8, v8, v9, v7')
    A('v_lshlrev_b32 v8, 3, v8')
    A(f'v_mul_u32_u24 v9, {CS2}, v1')
    A(f'v_mul_u32_u24 v10, {P2P}, v6')
    A('v_add3_u32 v10, v10, v9, v7')
    A('v_lshlrev_b32 v10, 3, v10')
    A(f'v_mul_u32_u24 v11, {P2P*8}, v0')
    A('v_sub_u32 v13, 256, v0')
    A('v_and_b32 v13, 255, v13')
    A(f'v_mul_u32_u24 v13, {P2P*8}, v13')
    A(f'v_add_u32 v13, {CS2*8}, v13')
    A('v_cvt_f32_u32 v12, v7')
    T8 = 72
    A(f'v_mul_f32 v17, 0x{f2u(1/8):08x}, v12')
    A('v_add_u32 v18, -128, v0')
    A('v_cmp_gt_u32 vcc, 8, v18')
    A('s_nop 1')
    A('v_cndmask_b32 v17, 0, v17, vcc')
    A(f'v_cos_f32 v{T8}, v17')
    A(f'v_sin_f32_e64 v{T8+1}, -v17')
    A(f'v_mul_f32 v12, 0x{f2u(1/128):08x}, v12')
    A('v_cvt_f32_u32 v17, s2')
    A(f'v_mul_f32 v17, 0x{f2u(1/1024):08x}, v17')
    A('v_cos_f32 v18, v17')
    A('v_sin_f32_e64 v19, -v17')
    A('s_nop 0')
    A('v_readfirstlane_b32 s44, v18')
    A('v_readfirstlane_b32 s45, v19')
    A.stamp(1)
    A('s_waitcnt vmcnt(16)')
    A.stamp(2)
    y = cx.dft(x, -1, consts)
    for k1 in range(16):
        v = y[k1]
        if k1: v = cx.cmul(v.r, v, P(TW[k1]))
        v = cx.resolve(v)
        A(f'ds_write_b64 v5, {P(v.r)} offset:{k1*K1S*8}')
        pool.put(v.r)
    gen_tw(A, 12, 16, TW)
    A('s_waitcnt lgkmcnt(0)')
    A('s_barrier')
    x = []
    for n2 in range(16):
        r = pool.get()
        A(f'ds_read_b64 {P(r)}, v8 offset:{n2*64}')
        x.append(V(r))
    A('s_waitcnt lgkmcnt(0)')
    A('s_barrier')
    y = cx.dft(x, -1, consts)
    for k2 in range(16):
        v = y[k2]
        if k2: v = cx.cmul(v.r, v, P(TW[k2]))
        else: v = cx.cmul(v.r, v, P(T8))
        v = cx.resolve(v)
        A(f'ds_write_b64 v10, {P(v.r)} offset:{k2*16*P2P*8}')
        pool.put(v.r)
    A('s_waitcnt lgkmcnt(0)')
    A('s_barrier')
    DA = 100; DB = 116
    pool.free = [r for r in pool.free if not (100 <= r < 132)]
    for (ad, base) in ((11, DA), (13, DB)):
        for q in range(4):
            A(f'ds_read_b128 v[{base+4*q}:{base+4*q+3}], v{ad} offset:{16*q}')
    A('s_waitcnt lgkmcnt(4)')
    a = cx.dft([V(DA+2*n) for n in range(8)], -1, consts)
    A('s_waitcnt lgkmcnt(0)')
    b = cx.dft([V(DB+2*n) for n in range(8)], -1, consts)
    a = [cx.resolve(v) for v in a]; b = [cx.resolve(v) for v in b]
    A('s_barrier')
    A.stamp(3)
    A('s_waitcnt vmcnt(0)')
    sc = 1.0/(2*2048*1024)
    A(f's_mov_b32 s42, 0x{f2u(sc):08x}')
    A(f's_mov_b32 s43, 0x{f2u(sc):08x}')
    z1 = [None]*8; z2 = [None]*8
    W1 = 74; W2 = 76; WT = 78
    A('s_cmp_eq_u32 s2, 0')
    A('s_cselect_b32 s46, 1, 0')
    for k3 in range(8):
        Av = a[k3]; Bv = b[7-k3]
        A(f'v_lshlrev_b32 v{W1}, 16, v{WR1+k3}')
        A(f'v_and_b32 v{W1+1}, 0xffff0000, v{WR1+k3}')
        A(f'v_lshlrev_b32 v{W2}, 16, v{WR2+k3}')
        A(f'v_and_b32 v{W2+1}, 0xffff0000, v{WR2+k3}')
        A('s_cmp_eq_u32 s46, 0')
        A(f's_cbranch_scc1 L_{tag}_s{k3}')
        A(f'v_lshlrev_b32 v{WT}, 16, v{WX+k3}')
        A(f'v_and_b32 v{WT+1}, 0xffff0000, v{WX+k3}')
        A(f'v_pk_add_f32 {P(W1)}, {P(W1)}, {P(WT)} neg_hi:[0,1]')
        A(f'v_pk_mul_f32 {P(W1)}, {P(W1)}, 0.5 op_sel_hi:[1,0]')
        A(f'v_lshlrev_b32 v{WT}, 16, v{WX+8+k3}')
        A(f'v_and_b32 v{WT+1}, 0xffff0000, v{WX+8+k3}')
        A(f'v_pk_add_f32 {P(W2)}, {P(W2)}, {P(WT)} neg_hi:[0,1]')
        A(f'v_pk_mul_f32 {P(W2)}, {P(W2)}, 0.5 op_sel_hi:[1,0]')
        A.label(f'L_{tag}_s{k3}')
        A(f'v_pk_mul_f32 {P(W1)}, {P(W1)}, s[42:43]')
        A(f'v_pk_mul_f32 {P(W2)}, {P(W2)}, s[42:43]')
        E = pool.get(); O = pool.get()
        A(f'v_pk_add_f32 {P(E)}, {P(Av.r)}, {P(Bv.r)} neg_hi:[0,1]')
        A(f'v_pk_add_f32 {P(O)}, {P(Av.r)}, {P(Bv.r)} neg_lo:[0,1]')
        T = cx.cmul(O, V(O), 's[44:45]')
        Pv = cx.addq(Av.r, V(E), T, 3)
        Qv = cx.addq(Bv.r, V(E), T, 1)
        Y1 = cx.cmul(Pv.r, Pv, P(W1))
        Y2 = cx.cmul(Qv.r, Qv, P(W2), conj=True)
        S1 = cx.addq(E, Y1, Y2, 0)
        D1 = cx.addq(O, Y1, Y2, 2)
        U = cx.cmul(O, D1, 's[44:45]', conj=True)
        z1[k3] = cx.addq(Av.r, S1, U, 1)
        A(f'v_pk_add_f32 {P(Bv.r)}, {P(E)}, {P(O)} op_sel:[0,1] op_sel_hi:[1,0] neg_hi:[1,0]')
        z2[7-k3] = V(Bv.r)
        pool.put(E); pool.put(O)
    A.stamp(4)
    for (z, ad) in ((z1, 11), (z2, 13)):
        y = cx.dft(z, +1, consts)
        for n3 in range(8):
            v = cx.resolve(y[n3])
            A(f'ds_write_b64 v{ad}, {P(v.r)} offset:{n3*8}')
            pool.put(v.r)
    A('s_waitcnt lgkmcnt(0)')
    A('s_barrier')
    x = []
    for k2 in range(16):
        r = pool.get()
        A(f'ds_read_b64 {P(r)}, v10 offset:{k2*16*P2P*8}')
        x.append(V(r))
    A('s_waitcnt lgkmcnt(0)')
    A('s_barrier')
    for k2 in range(16):
        x[k2] = cx.cmul(x[k2].r, x[k2], P(TW[k2]) if k2 else P(T8), conj=True)
    y = cx.dft(x, +1, consts)
    for n2 in range(16):
        v = cx.resolve(y[n2])
        A(f'ds_write_b64 v8, {P(v.r)} offset:{n2*64}')
        pool.put(v.r)
    gen_tw(A, 4, 16, TW)
    A('s_waitcnt lgkmcnt(0)')
    A('s_barrier')
    x = []
    for k1 in range(16):
        r = pool.get()
        A(f'ds_read_b64 {P(r)}, v5 offset:{k1*K1S*8}')
        x.append(V(r))
    A('v_lshlrev_b32 v3, 3, v2')
    A('s_lshl_b32 s19, s18, 14')
    A(f's_add_u32 s19, s19, {ZP_OFF}')
    A('s_waitcnt lgkmcnt(0)')
    for k1 in range(1, 16):
        x[k1] = cx.cmul(x[k1].r, x[k1], P(TW[k1]), conj=True)
    y = cx.dft(x, +1, consts)
    A.stamp(5)
    for n1 in range(16):
        v = cx.resolve(y[n1])
        A(f'buffer_store_dwordx2 {P(v.r)}, v3, s[12:15], s19 offen offset:{(n1%4)*1024}')
        if n1 % 4 == 3 and n1 < 15: A('s_add_u32 s19, s19, 4096')
    A.stamp(6)
    A.stamp_flush(7, 12, 0)
    A('s_endpgm')
    return 156

def role_wtr(A, tag):
    A.stamp(0)
    A('s_load_dwordx2 s[4:5], s[0:1], 8')
    A('s_load_dwordx2 s[6:7], s[0:1], 16')
    A('s_load_dwordx2 s[28:29], s[0:1], 96')
    wave_ids(A)
    A('s_and_b32 s16, s2, 31')
    A('s_lshr_b32 s17, s2, 5')
    A('s_lshl_b32 s18, s16, 6')
    A('s_lshl_b32 s19, s30, 4')
    A('s_add_u32 s19, s19, s18')
    A('s_mul_i32 s19, s19, 1026')
    A('s_lshl_b32 s31, s17, 7')
    A('s_add_u32 s19, s19, s31')
    A('v_lshlrev_b32 v7, 1, v6')
    A('s_lshl_b32 s36, s17, 6')
    A('v_add_u32 v8, s36, v6')
    A('s_waitcnt lgkmcnt(0)')
    srd(A, 8, 4, 2101248)
    srd(A, 12, 6, 2101248)
    srd(A, 32, 28, WS_BYTES)
    A('v_cmp_gt_u32 vcc, 513, v8')
    A('s_and_saveexec_b64 s[38:39], vcc')
    for r in range(16):
        A(f'buffer_load_ushort v{16+r}, v7, s[8:11], s19 offen')
        A(f'buffer_load_short_d16_hi v{32+r}, v7, s[12:15], s19 offen')
        if r < 15: A('s_add_u32 s19, s19, 1026')
    A('s_mov_b64 exec, s[38:39]')
    A('s_mul_i32 s40, s30, 16*260')
    A('v_lshlrev_b32 v9, 2, v6')
    A('v_add_u32 v9, s40, v9')
    for r in range(16):
        A(f's_waitcnt vmcnt({2*(15-r)})')
        A(f'v_or_b32 v{16+r}, v{16+r}, v{32+r}')
        A(f'ds_write_b32 v9, v{16+r} offset:{260*r}')
    A('s_waitcnt lgkmcnt(0)')
    A('s_barrier')
    A('v_mul_u32_u24 v10, 260, v6')
    A('s_lshl_b32 s41, s30, 6')
    A('v_add_u32 v10, s41, v10')
    for r in range(16):
        A(f'ds_read_b32 v{16+r}, v10 offset:{4*r}')
    A('s_lshl_b32 s42, s30, 4')
    A('s_add_u32 s42, s42, s36')
    A('s_lshl_b32 s43, s18, 2')
    A(f's_add_u32 s43, s43, {WT_OFF}')
    A('v_lshlrev_b32 v11, 2, v6')
    for r in range(16):
        A(f's_waitcnt lgkmcnt({15-r})')
        A(f's_cmp_gt_u32 s42, 512')
        A(f's_cbranch_scc1 L_{tag}_done')
        A('s_lshl_b32 s44, s42, 13')
        A('s_add_u32 s44, s44, s43')
        A(f'buffer_store_dword v{16+r}, v11, s[32:35], s44 offen')
        A('s_add_u32 s42, s42, 1')
    A.label(f'L_{tag}_done')
    A.stamp(1)
    A.stamp_flush(2, 32, 0)
    A('s_endpgm')
    return 48
```

```python
from asmlib import *
from kA import srd
from roles_a import *
import math
LOG2E = math.log2(math.e)
US = 80
UCH = 96*US
KCH = 16656
LDS_CONV = 4*(UCH + KCH)
TCH = 1312; PCH = 2048
LDS_KGEN = 4*(TCH + PCH)
LDS_TR = 128*128 + 512
def sigbase(s): return s*4160 + (8 if s else 0)

def role_kgen(A, tag):
    A.stamp(0)
    A('s_load_dwordx8 s[64:71], s[0:1], 32')
    A('s_load_dwordx2 s[72:73], s[0:1], 64')
    A('s_load_dwordx2 s[80:81], s[0:1], 96')
    A('v_lshrrev_b32 v1, 6, v0')
    A('s_nop 0')
    A('v_readfirstlane_b32 s30, v1')
    A('v_and_b32 v2, 63, v0')
    A('s_lshl_b32 s31, s2, 2')
    A('s_add_u32 s31, s31, s30')
    A('s_waitcnt lgkmcnt(0)')
    srd(A, 8, 64, 262144)
    srd(A, 12, 66, 262144)
    srd(A, 20, 68, 262144)
    srd(A, 24, 70, 262144)
    srd(A, 32, 72, 2048)
    srd(A, 44, 80, WS_BYTES)
    A('v_lshlrev_b32 v3, 2, v2')
    A('s_lshl_b32 s48, s31, 8')
    A('s_lshl_b32 s49, s31, 1')
    A('v_mov_b32 v4, 0')
    A('buffer_load_dword v10, v3, s[8:11], s48 offen')
    A('buffer_load_dword v11, v3, s[12:15], s48 offen')
    A('buffer_load_dword v12, v3, s[20:23], s48 offen')
    A('buffer_load_dword v13, v3, s[24:27], s48 offen')
    A('buffer_load_ushort v14, v4, s[32:35], s49 offen')
    A(f's_mul_i32 s51, s30, {PCH}')
    A('v_lshlrev_b32 v7, 5, v2')
    A('v_add_u32 v7, s51, v7')
    A('s_waitcnt vmcnt(0)')
    A('v_lshlrev_b32 v14, 16, v14')
    A(f'v_mul_f32 v14, 0x{f2u(LOG2E):08x}, v14')
    A('v_exp_f32 v14, v14')
    A('s_nop 0')
    A('v_cvt_pk_bf16_f32 v14, v14, v14')
    A('v_lshlrev_b32 v14, 16, v14')
    for e in range(2):
        o = 24 + 4*e
        if e == 0:
            for k in range(4): A(f'v_lshlrev_b32 v{o+k}, 16, v{10+k}')
        else:
            for k in range(4): A(f'v_and_b32 v{o+k}, 0xffff0000, v{10+k}')
        A(f'v_mul_f32 v{o}, 0x{f2u(LOG2E):08x}, v{o}')
        A(f'v_exp_f32 v{o}, v{o}')
        A(f'v_mul_f32 v{o+1}, v{o+1}, v14')
        A(f'v_cvt_pk_bf16_f32 v{o}, v{o}, v{o}')
        A(f'v_lshlrev_b32 v{o}, 16, v{o}')
        A(f'v_mul_f32 v{o}, v{o}, v14')
        A(f'v_mul_f32 v{o}, 0x{f2u(-LOG2E):08x}, v{o}')
        A(f'v_mul_f32 v{o+1}, 0x{f2u(1/(2*math.pi)):08x}, v{o+1}')
        A(f'v_mul_f32 v{o+2}, v{o+2}, v14')
        A(f'v_mul_f32 v{o+3}, v{o+3}, v14')
        A(f'v_add_f32 v{o+2}, v{o+2}, v{o+2}')
        A(f'v_add_f32 v{o+3}, v{o+3}, v{o+3}')
        A(f'ds_write_b128 v7, v[{o}:{o+3}] offset:{16*e}')
    A.stamp(1)
    A('v_and_b32 v16, 15, v2')
    A('v_lshrrev_b32 v17, 4, v2')
    A('v_cvt_f32_u32 v18, v16')
    A(f'v_mul_f32 v19, 0x{f2u(16.0):08x}, v18')
    A('v_cmp_eq_u32 s[54:55], 0, v16')
    A(f'v_mov_b32 v20, 0x{f2u(256.0):08x}')
    A('s_nop 0')
    A('v_cndmask_b32 v19, v19, v20, s[54:55]')
    A('v_lshlrev_b32 v21, 6, v17')
    A('v_add_u32 v21, s51, v21')
    ACC = [32 + 4*h for h in range(4)]
    for r in range(32, 48): A(f'v_mov_b32 v{r}, 0')
    GF = [48 + 4*h for h in range(4)]
    EF = [64 + 4*h for h in range(4)]
    PR = 80
    pool = Pool(96, 8)
    cx = Cx(A, pool)
    A('s_waitcnt lgkmcnt(0)')
    A('s_mov_b32 s56, 0')
    A.label(f'L_{tag}_kg')
    for q in range(4):
        A(f'ds_read_b128 v[{PR+4*q}:{PR+4*q+3}], v21 offset:{16*q}')
    A('v_add_u32 v21, 256, v21')
    for q in range(4):
        A(f's_waitcnt lgkmcnt({3-q})')
        p = PR + 4*q
        E = pool.get(); F = pool.get(); t = pool.get()
        for (Z, fl) in ((E, 18), (F, 19)):
            A(f'v_mul_f32 v{t}, v{p}, v{fl}')
            A(f'v_mul_f32 v{t+1}, v{p+1}, v{fl}')
            A(f'v_exp_f32 v{t}, v{t}')
            A(f'v_fract_f32 v{t+1}, v{t+1}')
            A(f'v_cos_f32 v{Z}, v{t+1}')
            A(f'v_sin_f32 v{Z+1}, v{t+1}')
            A('s_nop 0')
            A(f'v_pk_mul_f32 {P(Z)}, {P(Z)}, {P(t)} op_sel_hi:[1,0]')
        for h in range(4):
            A(f'v_cvt_pk_bf16_f32 v{EF[h]+q}, v{E}, v{E+1}')
            G = cx.cmul(t, V(F), P(p+2))
            if h == 0:
                A(f'v_cndmask_b32 v{t}, v{t}, v{p+2}, s[54:55]')
                A(f'v_cndmask_b32 v{t+1}, v{t+1}, v{p+3}, s[54:55]')
            A(f'v_cvt_pk_bf16_f32 v{GF[h]+q}, v{t}, -v{t+1}')
            if h < 3:
                for Z in (E, F):
                    t2 = pool.get()
                    A(f'v_pk_mul_f32 {P(t2)}, {P(Z)}, {P(Z)} op_sel:[0,0] op_sel_hi:[0,1]')
                    A(f'v_pk_fma_f32 {P(Z)}, {P(Z)}, {P(Z)}, {P(t2)} op_sel:[1,1,0] op_sel_hi:[0,1,1] neg_lo:[0,1,0]')
                    pool.put(t2)
        pool.put(E); pool.put(F); pool.put(t)
    A('s_nop 1')
    for h in range(4):
        A(f'v_mfma_f32_16x16x32_bf16 v[{ACC[h]}:{ACC[h]+3}], v[{GF[h]}:{GF[h]+3}], v[{EF[h]}:{EF[h]+3}], v[{ACC[h]}:{ACC[h]+3}]')
    A('s_add_u32 s56, s56, 1')
    A('s_cmp_lt_u32 s56, 8')
    A(f's_cbranch_scc1 L_{tag}_kg')
    A('s_nop 7'); A('s_nop 3')
    A.stamp(2)
    A(f's_mul_i32 s58, s30, {TCH}')
    A(f's_add_u32 s58, s58, {4*PCH}')
    A('v_lshlrev_b32 v22, 7, v17')
    A('v_lshl_add_u32 v22, v16, 1, v22')
    A('v_add_u32 v22, s58, v22')
    for h in range(4):
        for r in range(4):
            A(f'v_cvt_pk_bf16_f32 v{ACC[h]+r}, v{ACC[h]+r}, v{ACC[h]+r}')
    for r in range(4):
        A(f'ds_write_b16 v22, v{ACC[0]+r} offset:{32*r}')
    A('s_mov_b32 exec_lo, 0')
    for h in range(1, 4):
        for r in range(4):
            A(f'ds_write_b16 v22, v{ACC[h]+r} offset:{32*r + 256*h}')
    A('s_mov_b64 exec, 1')
    A(f'ds_write_b16 v22, v{ACC[3]} offset:1280')
    A('s_mov_b64 exec, -1')
    A('v_lshlrev_b32 v24, 2, v2')
    A(f's_sub_u32 s59, s58, {2*(0x4380-256)}')
    A('s_waitcnt lgkmcnt(0)')
    G0 = 48; G1 = 66
    for it in range(9):
        for e in range(4):
            r = (G0 if e % 2 == 0 else G1) + 2*it + e//2
            mb = 256*it - 32 + e
            A(f'v_add_u32 v25, {mb}, v24')
            if it == 0:
                A('v_max_i32 v25, 0, v25')
                A('v_lshl_add_u32 v25, v25, 1, s58')
            else:
                if it == 8: A('v_min_u32 v25, 2047, v25')
                A('v_cvt_f32_u32 v25, v25')
                A('v_cvt_pk_bf16_f32 v25, v25, v25')
                A('v_and_b32 v25, 0xffff, v25')
                A('v_lshl_add_u32 v25, v25, 1, s59')
            op = 'ds_read_u16_d16' if e % 2 == 0 else 'ds_read_u16_d16_hi'
            A(f'{op} v{r}, v25')
    A('s_waitcnt lgkmcnt(0)')
    for r in range(18): A(f'v_or_b32 v{G0+r}, v{G0+r}, v{G1+r}')
    A('v_cmp_gt_u32 vcc, 8, v2')
    A('s_nop 1')
    A(f'v_cndmask_b32_e64 v{G0}, v{G0}, 0, vcc')
    A(f'v_cndmask_b32_e64 v{G0+1}, v{G0+1}, 0, vcc')
    A('v_lshlrev_b32 v26, 3, v2')
    A('s_mul_i32 s49, s31, 4160')
    A(f's_add_u32 s49, s49, {KT_OFF}')
    for it in range(9):
        if it == 8: A('s_mov_b64 exec, 0xff')
        A(f'buffer_store_dwordx2 v[{G0+2*it}:{G0+2*it+1}], v26, s[44:47], s49 offen offset:{512*(it%8)}')
        if it == 7: A('s_add_u32 s49, s49, 4096')
    A('s_mov_b64 exec, -1')
    A.stamp(3)
    A.stamp_flush(4, 44, 0)
    A('s_endpgm')
    return 112

def role_utr(A, tag):
    A.stamp(0)
    A('s_load_dwordx2 s[4:5], s[0:1], 24')
    A('s_load_dwordx2 s[28:29], s[0:1], 96')
    A('s_and_b32 s16, s2, 15')
    A('s_lshr_b32 s17, s2, 4')
    A('v_lshrrev_b32 v1, 3, v0')
    A('v_and_b32 v2, 7, v0')
    A('v_lshlrev_b32 v3, 11, v1')
    A('v_lshl_add_u32 v3, v2, 4, v3')
    A('s_lshl_b32 s18, s16, 18')
    A('s_lshl_b32 s19, s17, 7')
    A('s_add_u32 s18, s18, s19')
    A('s_waitcnt lgkmcnt(0)')
    srd(A, 8, 4, 4194304)
    srd(A, 32, 28, WS_BYTES)
    for i in range(4):
        A(f'buffer_load_dwordx4 v[{16+4*i}:{19+4*i}], v3, s[8:11], s18 offen')
        if i < 3: A('s_add_u32 s18, s18, 65536')
    A('v_lshlrev_b32 v4, 7, v1')
    A('v_lshrrev_b32 v5, 3, v1')
    A('v_lshl_add_u32 v4, v5, 4, v4')
    A('v_lshl_add_u32 v4, v2, 4, v4')
    for i in range(4):
        A(f's_waitcnt vmcnt({3-i})')
        A(f'ds_write_b128 v4, v[{16+4*i}:{19+4*i}] offset:{i*(32*128+64)}')
    A('v_and_b32 v6, 15, v0')
    A('v_lshrrev_b32 v7, 4, v0')
    A('v_mul_u32_u24 v8, 1040, v6')
    A('v_lshl_add_u32 v8, v7, 1, v8')
    A('s_waitcnt lgkmcnt(0)')
    A('s_barrier')
    for i in range(4):
        for e in range(8):
            op = 'ds_read_u16_d16' if e % 2 == 0 else 'ds_read_u16_d16_hi'
            r = (32 if e % 2 == 0 else 48) + 4*i + e//2
            A(f'{op} v{r}, v8 offset:{(7-e)*128 + 32*i}')
    A('v_lshlrev_b32 v9, 12, v7')
    A('v_lshl_add_u32 v9, v6, 4, v9')
    A('s_lshl_b32 s18, s17, 18')
    A('s_lshl_b32 s19, s16, 8')
    A('s_add_u32 s18, s18, s19')
    A(f's_add_u32 s18, s18, {UT_OFF}')
    for i in range(4):
        A(f's_waitcnt lgkmcnt({min(15, 8*(3-i))})')
        if 8*(3-i) > 15: A('s_waitcnt lgkmcnt(15)')
        for k in range(4): A(f'v_or_b32 v{32+4*i+k}, v{32+4*i+k}, v{48+4*i+k}')
        A(f'buffer_store_dwordx4 v[{32+4*i}:{35+4*i}], v9, s[32:35], s18 offen')
        if i < 3: A('s_add_u32 s18, s18, 65536')
    A.stamp(1)
    A.stamp_flush(2, 32, 0)
    A('s_endpgm')
    return 64

def role_ytr(A, tag):
    A.stamp(0)
    A('s_load_dwordx2 s[4:5], s[0:1], 80')
    A('s_load_dwordx2 s[28:29], s[0:1], 96')
    A('s_and_b32 s16, s2, 15')
    A('s_lshr_b32 s17, s2, 4')
    A('v_and_b32 v6, 15, v0')
    A('v_lshrrev_b32 v7, 4, v0')
    A('v_lshlrev_b32 v9, 12, v7')
    A('v_lshl_add_u32 v9, v6, 4, v9')
    A('s_lshl_b32 s18, s17, 18')
    A('s_lshl_b32 s19, s16, 8')
    A('s_add_u32 s18, s18, s19')
    A(f's_add_u32 s18, s18, {YT_OFF}')
    A('s_waitcnt lgkmcnt(0)')
    srd(A, 8, 4, 8388608)
    srd(A, 32, 28, WS_BYTES)
    for i in range(4):
        A(f'buffer_load_dwordx4 v[{16+4*i}:{19+4*i}], v9, s[32:35], s18 offen')
        if i < 3: A('s_add_u32 s18, s18, 65536')
    A('v_lshlrev_b32 v4, 8, v7')
    A('v_lshrrev_b32 v5, 3, v7')
    A('v_lshl_add_u32 v4, v5, 4, v4')
    A('v_lshl_add_u32 v4, v6, 4, v4')
    for i in range(4):
        A(f's_waitcnt vmcnt({3-i})')
        A(f'ds_write_b128 v4, v[{16+4*i}:{19+4*i}] offset:{i*(16*256+32)}')
    A('v_and_b32 v2, 7, v0')
    A('v_lshrrev_b32 v1, 3, v0')
    A('v_mul_u32_u24 v8, 2064, v2')
    A('v_lshl_add_u32 v8, v1, 1, v8')
    A('s_waitcnt lgkmcnt(0)')
    A('s_barrier')
    for i in range(4):
        for e in range(8):
            op = 'ds_read_u16_d16' if e % 2 == 0 else 'ds_read_u16_d16_hi'
            r = (32 if e % 2 == 0 else 48) + 4*i + e//2
            A(f'{op} v{r}, v8 offset:{e*256 + 64*i}')
    A('v_lshlrev_b32 v3, 12, v1')
    A('v_lshl_add_u32 v3, v2, 4, v3')
    A('s_lshl_b32 s18, s16, 19')
    A('s_lshl_b32 s19, s17, 7')
    A('s_add_u32 s18, s18, s19')
    A('s_add_u32 s18, s18, 2048')
    for i in range(4):
        A(f's_waitcnt lgkmcnt({min(15, 8*(3-i))})')
        for k in range(4): A(f'v_or_b32 v{32+4*i+k}, v{32+4*i+k}, v{48+4*i+k}')
        A(f'buffer_store_dwordx4 v[{32+4*i}:{35+4*i}], v3, s[8:11], s18 offen')
        if i < 3: A('s_add_u32 s18, s18, 131072')
    A.stamp(1)
    A.stamp_flush(2, 32, 0)
    A('s_endpgm')
    return 64

def role_conv(A, tag):
    A.stamp(0)
    A('s_load_dwordx2 s[76:77], s[0:1], 72')
    A('s_load_dwordx2 s[80:81], s[0:1], 96')
    A('v_lshrrev_b32 v1, 6, v0')
    A('s_nop 0')
    A('v_readfirstlane_b32 s30, v1')
    A('v_and_b32 v2, 63, v0')
    A('s_lshl_b32 s31, s2, 2')
    A('s_add_u32 s31, s31, s30')
    A(f's_mul_i32 s48, s30, {UCH+KCH}')
    A(f's_add_u32 s59, s48, {UCH}')
    A('s_waitcnt lgkmcnt(0)')
    srd(A, 36, 76, 2048)
    srd(A, 44, 80, WS_BYTES)
    A('v_lshlrev_b32 v3, 4, v2')
    A('s_lshl_b32 s49, s31, 12')
    A(f's_add_u32 s50, s49, {UT_OFF}')
    UR = 112
    for i in range(4):
        A(f'buffer_load_dwordx4 v[{UR+4*i}:{UR+4*i+3}], v3, s[44:47], s50 offen offset:{1024*i}')
    G0 = 64; H0 = 82
    A('v_lshlrev_b32 v26, 3, v2')
    A('s_mul_i32 s51, s31, 4160')
    A(f's_add_u32 s51, s51, {KT_OFF}')
    A('s_add_u32 s52, s51, 4096')
    for it in range(9):
        sr = 51 if it < 8 else 52
        A(f'buffer_load_dwordx2 v[{G0+2*it}:{G0+2*it+1}], v26, s[44:47], s{sr} offen offset:{512*(it%8)}')
        A(f'buffer_load_dwordx2 v[{H0+2*it}:{H0+2*it+1}], v26, s[44:47], s{sr} offen offset:{512*(it%8)+8}')
    A('v_mov_b32 v4, 0')
    A('s_lshl_b32 s53, s31, 1')
    A('buffer_load_ushort v15, v4, s[36:39], s53 offen')
    A('v_mov_b32 v20, 0'); A('v_mov_b32 v21, 0'); A('v_mov_b32 v22, 0'); A('v_mov_b32 v23, 0')
    A('v_add_u32 v6, s48, v3')
    A('ds_write_b128 v6, v[20:23]')
    A('ds_write_b128 v6, v[20:23] offset:1024')
    A('s_mov_b64 exec, 0xffffffff')
    A('ds_write_b128 v6, v[20:23] offset:2048')
    A('s_mov_b64 exec, -1')
    A('v_lshrrev_b32 v7, 2, v2')
    A(f'v_mul_u32_u24 v7, {US}, v7')
    A('v_and_b32 v8, 3, v2')
    A('v_lshl_add_u32 v7, v8, 4, v7')
    A('v_add_u32 v7, s48, v7')
    A('v_add_u32 v23, s59, v26')
    for i in range(4):
        A(f's_waitcnt vmcnt({19+3-i})')
        A(f'ds_write_b128 v7, v[{UR+4*i}:{UR+4*i+3}] offset:{(32+16*i)*US}')
    for it in range(9):
        A(f's_waitcnt vmcnt({1+2*(8-it)})')
        d0, d1, d2, d3 = G0+2*it, G0+2*it+1, H0+2*it, H0+2*it+1
        if it == 8: A('s_mov_b64 exec, 0xff')
        A(f'ds_write_b64 v23, v[{d0}:{d1}] offset:{512*it}')
        if it == 8: A('s_mov_b64 exec, 0x7f')
        A(f'v_alignbit_b32 v26, v{d1}, v{d0}, 16')
        A(f'v_alignbit_b32 v27, v{d2}, v{d1}, 16')
        A(f'v_mov_b32 v28, v27')
        A(f'v_alignbit_b32 v29, v{d3}, v{d2}, 16')
        A(f'ds_write_b64 v23, v[26:27] offset:{512*it + sigbase(1)}')
        A(f'v_mov_b32 v30, v{d1}')
        A(f'v_mov_b32 v31, v{d2}')
        A(f'ds_write_b64 v23, v[30:31] offset:{512*it + sigbase(2)}')
        A(f'ds_write_b64 v23, v[28:29] offset:{512*it + sigbase(3)}')
    A('s_mov_b64 exec, -1')
    A.stamp(1)
    A('v_and_b32 v16, 31, v2')
    A('v_lshrrev_b32 v17, 5, v2')
    A('v_add_u32 v18, 1, v16')
    A('v_and_b32 v18, 3, v18')
    A('v_mul_u32_u24 v19, 4160, v18')
    A('v_cmp_lt_u32 vcc, 0, v18')
    A('s_nop 1')
    A('v_cndmask_b32_e64 v20, 0, 8, vcc')
    A('v_add_u32 v19, v19, v20')
    A('v_lshlrev_b32 v20, 3, v17')
    A('v_sub_u32 v21, v16, v20')
    A('v_sub_u32 v21, v21, v18')
    A('v_add_u32 v21, 9, v21')
    A('v_lshl_add_u32 v19, v21, 1, v19')
    A('v_add_u32 v19, s59, v19')
    A(f'v_mul_u32_u24 v20, {US}, v16')
    A('v_lshl_add_u32 v20, v17, 4, v20')
    A(f'v_add_u32 v20, {US}, v20')
    A('v_add_u32 v20, s48, v20')
    C0 = 32; C1 = 48
    for r in range(32, 64): A(f'v_mov_b32 v{r}, 0')
    steps = [(m, h) for m in range(64) for h in range(2)]
    NB = 4; FR = 64
    def issue(k):
        m, h = steps[k]; s = k % NB; b = FR + 12*s
        sp = 2*m - h
        A(f'ds_read_b64 v[{b}:{b+1}], v19 offset:{32*(sp+1)}')
        A(f'ds_read_b64 v[{b+2}:{b+3}], v19 offset:{32*(sp+1)+8}')
        n = 2
        if m < 32:
            A(f'ds_read_b128 v[{b+4}:{b+7}], v20 offset:{(-m+31)*US + 32*h}'); n += 1
        A(f'ds_read_b128 v[{b+8}:{b+11}], v20 offset:{(32-m+31)*US + 32*h}'); n += 1
        return n
    cnt = []
    for k in range(NB-1): cnt.append(issue(k))
    for k in range(len(steps)):
        if k + NB - 1 < len(steps): cnt.append(issue(k+NB-1))
        pend = sum(cnt[k+1:])
        A(f's_waitcnt lgkmcnt({min(pend,15)})')
        m, h = steps[k]; b = FR + 12*(k % NB)
        if m < 32:
            A(f'v_mfma_f32_32x32x16_bf16 v[{C0}:{C0+15}], v[{b}:{b+3}], v[{b+4}:{b+7}], v[{C0}:{C0+15}]')
        A(f'v_mfma_f32_32x32x16_bf16 v[{C1}:{C1+15}], v[{b}:{b+3}], v[{b+8}:{b+11}], v[{C1}:{C1+15}]')
    A.stamp(2)
    A(f'v_mul_u32_u24 v21, {US}, v16')
    A('v_lshlrev_b32 v22, 3, v17')
    A('v_add_u32 v24, v21, v22')
    A('v_add_u32 v24, s59, v24')
    A('v_sub_u32 v21, v21, v22')
    A(f'v_add_u32 v21, {32*US+8}, v21')
    A('v_add_u32 v21, s48, v21')
    UE = 64
    for T in range(2):
        for q in range(4):
            A(f'ds_read_b64 v[{UE+8*T+2*q}:{UE+8*T+2*q+1}], v21 offset:{T*32*US + 16*q}')
    A('s_waitcnt vmcnt(0)')
    A('v_lshlrev_b32 v15, 16, v15')
    A('s_waitcnt lgkmcnt(0)')
    for T in range(2):
        C = C0 if T == 0 else C1
        for q in range(4):
            ur = UE + 8*T + 2*q
            for e in range(4):
                pos = 3 - e
                src = ur + pos//2
                o = 26 + e
                if pos % 2 == 0: A(f'v_lshlrev_b32 v{o}, 16, v{src}')
                else: A(f'v_and_b32 v{o}, 0xffff0000, v{src}')
                A(f'v_mul_f32 v{o}, v{o}, v15')
                A(f'v_cvt_pk_bf16_f32 v{o}, v{o}, v{C+4*q+e}')
                A(f'v_lshlrev_b32 v25, 16, v{o}')
                A(f'v_and_b32 v{o}, 0xffff0000, v{o}')
                A(f'v_add_f32 v{o}, v{o}, v25')
            A('v_cvt_pk_bf16_f32 v30, v26, v27')
            A('v_cvt_pk_bf16_f32 v31, v28, v29')
            A(f'ds_write_b64 v24, v[30:31] offset:{T*32*US + 16*q}')
    A('v_sub_u32 v7, v7, s48' if False else 'v_subrev_u32 v7, s48, v7')
    A('v_add_u32 v7, s59, v7')
    for i in range(4):
        A(f'ds_read_b128 v[{UR+4*i}:{UR+4*i+3}], v7 offset:{16*i*US}')
    A(f's_add_u32 s50, s49, {YT_OFF}')
    for i in range(4):
        A(f's_waitcnt lgkmcnt({3-i})')
        A(f'buffer_store_dwordx4 v[{UR+4*i}:{UR+4*i+3}], v3, s[44:47], s50 offen offset:{1024*i}')
    A.stamp(3)
    A.stamp_flush(4, 44, 0)
    A('s_endpgm')
    return 128
```

```python
from asmlib import *
from kA import srd, gen_tw

ZR_OFF = 0; ZP_OFF = 16<<20; WT_OFF = 32<<20; UT_OFF = 40<<20; KT_OFF = 48<<20; YT_OFF = 56<<20
WS_BYTES = 268435456
CPS = 32768
RS = 5232; KS = 72; PB = 10
TS2 = 144; TS3 = 48
KC_STRIDE = 1312
LDS_ROW = 8*RS
K1S = 136; P2P = 10
CS1 = 16*K1S; CS2 = 256*P2P
LDS_COL = 2*CS2*8

def row_setup(A, T1, T2):
    A('v_cvt_f32_u32 v10, v6')
    A(f'v_mul_f32 v11, 0x{f2u(1/512):08x}, v10')
    gen_tw(A, 11, 8, T1)
    A('v_and_b32 v12, 7, v6')
    A('v_lshrrev_b32 v13, 3, v6')
    A('v_cvt_f32_u32 v14, v12')
    A(f'v_mul_f32 v15, 0x{f2u(1/64):08x}, v14')
    gen_tw(A, 15, 8, T2)
    A(f's_mul_i32 s40, s30, {2*RS}')
    A(f's_add_u32 s41, s40, {RS}')
    A('v_lshlrev_b32 v16, 3, v6')
    A(f'v_mul_u32_u24 v17, {KS}, v13')
    A('v_add_u32 v17, v17, v12')
    A('v_lshlrev_b32 v17, 3, v17')
    A(f'v_mul_u32_u24 v18, {PB}, v13')
    A('v_add_u32 v18, v18, v12')
    A('v_lshlrev_b32 v18, 3, v18')
    A(f'v_mul_u32_u24 v19, {PB*8}, v6')
    for (dst, sb) in ((22, 40), (26, 41)):
        A(f'v_add_u32 v{dst}, s{sb}, v16')
        A(f'v_add_u32 v{dst+1}, s{sb}, v17')
        A(f'v_add_u32 v{dst+2}, s{sb}, v18')
        A(f'v_add_u32 v{dst+3}, s{sb}, v19')

def xmap4(A):
    A('s_and_b32 s16, s2, 7')
    A('s_lshr_b32 s17, s2, 3')
    A('s_lshr_b32 s18, s17, 2')
    A('s_lshl_b32 s18, s18, 3')
    A('s_add_u32 s16, s16, s18')
    A('s_lshl_b32 s16, s16, 2')
    A('s_and_b32 s17, s17, 3')
    A('s_add_u32 s16, s16, s17')
    A('s_cmp_lt_u32 s2, 256')
    A('s_cselect_b32 s2, s16, s2')

def wave_ids(A):
    A('v_lshrrev_b32 v5, 6, v0')
    A('s_nop 0')
    A('v_readfirstlane_b32 s30, v5')
    A('v_and_b32 v6, 63, v0')

def role_rowfwd(A, tag):
    A.stamp(0)
    A('s_load_dwordx2 s[4:5], s[0:1], 0')
    A('s_load_dwordx2 s[28:29], s[0:1], 96')
    consts = emit_w16_consts(A, 20)
    wave_ids(A)
    A('s_lshl_b32 s16, s2, 3')
    A('s_lshl_b32 s17, s30, 1')
    A('s_add_u32 s17, s17, s16')
    A('s_lshl_b32 s17, s17, 11')
    A('s_add_u32 s18, s17, 2048')
    A('v_lshlrev_b32 v7, 2, v6')
    A('s_waitcnt lgkmcnt(0)')
    srd(A, 8, 4, 4194304)
    srd(A, 32, 28, WS_BYTES)
    RAW = 90
    for ri, sr in enumerate((17, 18)):
        for n1 in range(8):
            A(f'buffer_load_dword v{RAW+8*ri+n1}, v7, s[8:11], s{sr} offen offset:{256*n1}')
    T1 = {k: 40 + 2*k for k in range(8)}
    T2 = {k: 56 + 2*k for k in range(8)}
    row_setup(A, T1, T2)
    A('v_lshrrev_b32 v30, 2, v6')
    A(f'v_mul_u32_u24 v30, {TS2}, v30')
    A('v_and_b32 v31, 3, v6')
    A('v_lshl_add_u32 v30, v31, 2, v30')
    A('s_lshl_b32 s42, s30, 5')
    A('v_add_u32 v30, s42, v30')
    A('v_and_b32 v1, 7, v0')
    A('v_lshrrev_b32 v2, 3, v0')
    A(f'v_mul_u32_u24 v4, {TS2}, v2')
    A('v_lshl_add_u32 v4, v1, 4, v4')
    A(f'v_mul_u32_u24 v3, {CPS}, v2')
    A('v_lshl_add_u32 v3, v1, 4, v3')
    pool = Pool(106, 22)
    cx = Cx(A, pool)
    A.stamp(1)
    for ri, ad in enumerate((22, 26)):
        A(f's_waitcnt vmcnt({8*(1-ri)})')
        x = []
        for n1 in range(8):
            r = pool.get()
            A(f'v_lshlrev_b32 v{r}, 16, v{RAW+8*ri+n1}')
            A(f'v_and_b32 v{r+1}, 0xffff0000, v{RAW+8*ri+n1}')
            x.append(V(r))
        y = cx.dft(x, -1, consts)
        for k1 in range(8):
            v = y[k1]
            if k1: v = cx.cmul(v.r, v, P(T1[k1]))
            v = cx.resolve(v)
            A(f'ds_write_b64 v{ad}, {P(v.r)} offset:{k1*KS*8}')
            pool.put(v.r)
    A.stamp(2)
    X = []
    for ad in (22, 26):
        x = []
        for n2 in range(8):
            r = pool.get()
            A(f'ds_read_b64 {P(r)}, v{ad+1} offset:{n2*64}')
            x.append(V(r))
        X.append(x)
    for ri, ad in enumerate((22, 26)):
        A('s_waitcnt lgkmcnt(8)')
        y = cx.dft(X[ri], -1, consts)
        for k2 in range(8):
            v = y[k2]
            if k2: v = cx.cmul(v.r, v, P(T2[k2]))
            v = cx.resolve(v)
            A(f'ds_write_b64 v{ad+2}, {P(v.r)} offset:{k2*8*PB*8}')
            pool.put(v.r)
    DA = 72; DB = 88
    for (ad, base) in ((22, DA), (26, DB)):
        for q in range(4):
            A(f'ds_read_b128 v[{base+4*q}:{base+4*q+3}], v{ad+3} offset:{16*q}')
    A('s_waitcnt lgkmcnt(4)')
    a = cx.dft([V(DA+2*n) for n in range(8)], -1, consts)
    A('s_waitcnt lgkmcnt(0)')
    b = cx.dft([V(DB+2*n) for n in range(8)], -1, consts)
    a = [cx.resolve(v) for v in a]; b = [cx.resolve(v) for v in b]
    A('s_barrier')
    for ri, z in enumerate((a, b)):
        for k3 in range(8):
            A(f'v_cvt_pk_bf16_f32 v{z[k3].r}, v{z[k3].r}, v{z[k3].r+1}')
            A(f'ds_write_b32 v30, v{z[k3].r} offset:{16*ri + k3*16*TS2}')
    A('s_waitcnt lgkmcnt(0)')
    A('s_barrier')
    A.stamp(3)
    ST = 40
    for i in range(4):
        A(f'ds_read_b128 v[{ST+4*i}:{ST+4*i+3}], v4 offset:{32*TS2*i}')
    A('s_lshl_b32 s31, s2, 7')
    A(f's_add_u32 s31, s31, {ZR_OFF}')
    for i in range(4):
        A(f's_waitcnt lgkmcnt({3-i})')
        A(f'buffer_store_dwordx4 v[{ST+4*i}:{ST+4*i+3}], v3, s[32:35], s31 offen')
        if i < 3: A(f's_add_u32 s31, s31, {32*CPS}')
    A.stamp(4)
    A.stamp_flush(5, 32, 0)
    A('s_endpgm')
    return 150

def role_rowinv(A, tag):
    A.stamp(0)
    A('s_load_dwordx2 s[4:5], s[0:1], 80')
    A('s_load_dwordx2 s[28:29], s[0:1], 96')
    xmap4(A)
    consts = emit_w16_consts(A, 20)
    wave_ids(A)
    A('v_and_b32 v1, 1, v0')
    A('v_lshrrev_b32 v2, 1, v0')
    A('v_lshlrev_b32 v3, 13, v2')
    A('v_lshl_add_u32 v3, v1, 4, v3')
    A(f'v_mul_u32_u24 v4, {TS3}, v2')
    A('v_lshl_add_u32 v4, v1, 4, v4')
    A('s_lshl_b32 s31, s2, 5')
    A(f's_add_u32 s31, s31, {ZP_OFF}')
    A('s_waitcnt lgkmcnt(0)')
    srd(A, 8, 4, 8388608)
    srd(A, 32, 28, WS_BYTES)
    ST = 72
    for i in range(4):
        A(f'buffer_load_dwordx4 v[{ST+4*i}:{ST+4*i+3}], v3, s[32:35], s31 offen')
        if i < 3: A(f's_add_u32 s31, s31, {128*8192}')
    T1 = {k: 40 + 2*k for k in range(8)}
    T2 = {k: 56 + 2*k for k in range(8)}
    row_setup(A, T1, T2)
    A(f'v_mul_u32_u24 v30, {TS3}, v6')
    A('s_lshl_b32 s42, s30, 3')
    A('v_add_u32 v30, s42, v30')
    A.stamp(1)
    for i in range(4):
        A(f's_waitcnt vmcnt({3-i})')
        A(f'ds_write_b128 v4, v[{ST+4*i}:{ST+4*i+3}] offset:{128*TS3*i}')
    A('s_waitcnt lgkmcnt(0)')
    A('s_barrier')
    A.stamp(2)
    pool = Pool(104, 24)
    cx = Cx(A, pool)
    for k3 in range(8):
        A(f'ds_read_b64 v[{ST+2*k3}:{ST+2*k3+1}], v30 offset:{k3*64*TS3}')
    A('s_waitcnt lgkmcnt(0)')
    A('s_barrier')
    Z = []
    for ri in range(2):
        z = []
        for k3 in range(8):
            r = pool.get()
            A(f'v_lshlrev_b32 v{r}, 16, v{ST+2*k3+ri}')
            A(f'v_and_b32 v{r+1}, 0xffff0000, v{ST+2*k3+ri}')
            z.append(V(r))
        Z.append(z)
    for ri, ad in enumerate((22, 26)):
        y = cx.dft(Z[ri], +1, consts)
        for n3 in range(8):
            v = cx.resolve(y[n3])
            A(f'ds_write_b64 v{ad+3}, {P(v.r)} offset:{n3*8}')
            pool.put(v.r)
    X = []
    for ad in (22, 26):
        x = []
        for k2 in range(8):
            r = pool.get()
            A(f'ds_read_b64 {P(r)}, v{ad+2} offset:{k2*8*PB*8}')
            x.append(V(r))
        X.append(x)
    for ri, ad in enumerate((22, 26)):
        A('s_waitcnt lgkmcnt(8)')
        x = X[ri]
        for k2 in range(1, 8):
            x[k2] = cx.cmul(x[k2].r, x[k2], P(T2[k2]), conj=True)
        y = cx.dft(x, +1, consts)
        for n2 in range(8):
            v = cx.resolve(y[n2])
            A(f'ds_write_b64 v{ad+1}, {P(v.r)} offset:{n2*64}')
            pool.put(v.r)
    X = []
    for ad in (22, 26):
        x = []
        for k1 in range(8):
            r = pool.get()
            A(f'ds_read_b64 {P(r)}, v{ad} offset:{k1*KS*8}')
            x.append(V(r))
        X.append(x)
    A('s_lshl_b32 s16, s2, 3')
    A('s_lshl_b32 s17, s30, 1')
    A('s_add_u32 s17, s17, s16')
    A('s_lshl_b32 s17, s17, 12')
    A('s_add_u32 s18, s17, 4096')
    A('v_lshlrev_b32 v7, 2, v6')
    A.stamp(3)
    for ri, sr in enumerate((17, 18)):
        A(f's_waitcnt lgkmcnt({8*(1-ri)})')
        x = X[ri]
        for k1 in range(1, 8):
            x[k1] = cx.cmul(x[k1].r, x[k1], P(T1[k1]), conj=True)
        y = cx.dft(x, +1, consts)
        for n1 in range(8):
            v = cx.resolve(y[n1])
            A(f'v_cvt_pk_bf16_f32 v{v.r}, v{v.r}, v{v.r+1}')
            A(f'buffer_store_dword v{v.r}, v7, s[8:11], s{sr} offen offset:{256*n1}')
    A.stamp(4)
    A.stamp_flush(5, 32, 0)
    A('s_endpgm')
    return 152

def role_col(A, tag):
    A('s_cmp_lt_u32 s2, 257')
    A(f's_cbranch_scc1 L_{tag}_go')
    A('s_endpgm')
    A.label(f'L_{tag}_go')
    A.stamp(0)
    A('s_load_dwordx2 s[28:29], s[0:1], 96')
    xmap4(A)
    consts = emit_w16_consts(A, 20)
    A('v_lshrrev_b32 v1, 7, v0')
    A('v_and_b32 v2, 127, v0')
    A('s_nop 0')
    A('v_readfirstlane_b32 s30, v1')
    A('s_sub_u32 s16, 512, s2')
    A('s_and_b32 s17, s16, 511')
    A('s_cmp_eq_u32 s30, 0')
    A('s_cselect_b32 s18, s2, s17')
    A('s_lshr_b32 s19, s18, 2')
    A(f's_mul_i32 s19, s19, {CPS}')
    A('s_and_b32 s31, s18, 3')
    A('s_lshl_b32 s31, s31, 2')
    A('s_add_u32 s19, s19, s31')
    A(f's_add_u32 s19, s19, {ZR_OFF}')
    A('v_lshlrev_b32 v3, 4, v2')
    A('s_waitcnt lgkmcnt(0)')
    srd(A, 12, 28, WS_BYTES)
    pool = Pool(80, 30)
    cx = Cx(A, pool)
    x = []
    for n1 in range(16):
        r = pool.get()
        A(f'buffer_load_dword v{r+1}, v3, s[12:15], s19 offen offset:{(n1%2)*2048}')
        if n1 % 2 == 1 and n1 < 15: A('s_add_u32 s19, s19, 4096')
        x.append(V(r))
    WR1 = 140; WR2 = 148; WX = 20
    A('v_lshlrev_b32 v14, 2, v0')
    A('v_sub_u32 v15, 1024, v14')
    A('v_sub_u32 v16, 8192, v14')
    A('v_and_b32 v16, 8191, v16')
    A(f's_lshl_b32 s36, s2, 13')
    A(f's_add_u32 s36, s36, {WT_OFF}')
    A(f's_lshl_b32 s37, s16, 13')
    A(f's_add_u32 s37, s37, {WT_OFF}')
    A('s_add_u32 s38, s36, 4096')
    A('s_add_u32 s39, s37, 4096')
    for k3 in range(8):
        A(f'buffer_load_dword v{WR1+k3}, v14, s[12:15], s{36 if k3 < 4 else 38} offen offset:{1024*(k3%4)}')
    A(f'buffer_load_dword v{WR2}, v16, s[12:15], s37 offen')
    for k3 in range(1, 8):
        kk = 7 - k3
        A(f'buffer_load_dword v{WR2+k3}, v15, s[12:15], s{37 if kk < 4 else 39} offen offset:{1024*(kk%4)}')
    A('s_cmp_lg_u32 s2, 0')
    A(f's_cbranch_scc1 L_{tag}_nox')
    A(f'buffer_load_dword v{WX}, v16, s[12:15], s36 offen')
    for k3 in range(1, 8):
        kk = 7 - k3
        A(f'buffer_load_dword v{WX+k3}, v15, s[12:15], s{36 if kk < 4 else 38} offen offset:{1024*(kk%4)}')
    for k3 in range(8):
        A(f'buffer_load_dword v{WX+8+k3}, v14, s[12:15], s{37 if k3 < 4 else 39} offen offset:{1024*(k3%4)}')
    A.label(f'L_{tag}_nox')
    TW = {k: 40 + 2*k for k in range(16)}
    A('v_cvt_f32_u32 v4, v2')
    A(f'v_mul_f32 v4, 0x{f2u(1/2048):08x}, v4')
    gen_tw(A, 4, 16, TW)
    A(f'v_mul_u32_u24 v9, {CS1}, v1')
    A('v_add_u32 v5, v9, v2')
    A('v_lshlrev_b32 v5, 3, v5')
    A('v_lshrrev_b32 v6, 3, v2')
    A('v_and_b32 v7, 7, v2')
    A(f'v_mul_u32_u24 v8, {K1S}, v6')
    A('v_add3_u32 v8, v8, v9, v7')
    A('v_lshlrev_b32 v8, 3, v8')
    A(f'v_mul_u32_u24 v9, {CS2}, v1')
    A(f'v_mul_u32_u24 v10, {P2P}, v6')
    A('v_add3_u32 v10, v10, v9, v7')
    A('v_lshlrev_b32 v10, 3, v10')
    A(f'v_mul_u32_u24 v11, {P2P*8}, v0')
    A('v_sub_u32 v13, 256, v0')
    A('v_and_b32 v13, 255, v13')
    A(f'v_mul_u32_u24 v13, {P2P*8}, v13')
    A(f'v_add_u32 v13, {CS2*8}, v13')
    A('v_cvt_f32_u32 v12, v7')
    T8 = 72
    A(f'v_mul_f32 v17, 0x{f2u(1/8):08x}, v12')
    A('v_add_u32 v18, -128, v0')
    A('v_cmp_gt_u32 vcc, 8, v18')
    A('s_nop 1')
    A('v_cndmask_b32 v17, 0, v17, vcc')
    A(f'v_cos_f32 v{T8}, v17')
    A(f'v_sin_f32_e64 v{T8+1}, -v17')
    A(f'v_mul_f32 v12, 0x{f2u(1/128):08x}, v12')
    A('v_cvt_f32_u32 v17, s2')
    A(f'v_mul_f32 v17, 0x{f2u(1/1024):08x}, v17')
    A('v_cos_f32 v18, v17')
    A('v_sin_f32_e64 v19, -v17')
    A('s_nop 0')
    A('v_readfirstlane_b32 s44, v18')
    A('v_readfirstlane_b32 s45, v19')
    A.stamp(1)
    A('s_waitcnt vmcnt(16)')
    A.stamp(2)
    for v in x:
        A(f'v_lshlrev_b32 v{v.r}, 16, v{v.r+1}')
        A(f'v_and_b32 v{v.r+1}, 0xffff0000, v{v.r+1}')
    y = cx.dft(x, -1, consts)
    for k1 in range(16):
        v = y[k1]
        if k1: v = cx.cmul(v.r, v, P(TW[k1]))
        v = cx.resolve(v)
        A(f'ds_write_b64 v5, {P(v.r)} offset:{k1*K1S*8}')
        pool.put(v.r)
    gen_tw(A, 12, 16, TW)
    A('s_waitcnt lgkmcnt(0)')
    A('s_barrier')
    x = []
    for n2 in range(16):
        r = pool.get()
        A(f'ds_read_b64 {P(r)}, v8 offset:{n2*64}')
        x.append(V(r))
    A('s_waitcnt lgkmcnt(0)')
    A('s_barrier')
    y = cx.dft(x, -1, consts)
    for k2 in range(16):
        v = y[k2]
        if k2: v = cx.cmul(v.r, v, P(TW[k2]))
        else: v = cx.cmul(v.r, v, P(T8))
        v = cx.resolve(v)
        A(f'ds_write_b64 v10, {P(v.r)} offset:{k2*16*P2P*8}')
        pool.put(v.r)
    A('s_waitcnt lgkmcnt(0)')
    A('s_barrier')
    DA = 100; DB = 116
    pool.free = [r for r in pool.free if not (100 <= r < 132)]
    for (ad, base) in ((11, DA), (13, DB)):
        for q in range(4):
            A(f'ds_read_b128 v[{base+4*q}:{base+4*q+3}], v{ad} offset:{16*q}')
    A('s_waitcnt lgkmcnt(4)')
    a = cx.dft([V(DA+2*n) for n in range(8)], -1, consts)
    A('s_waitcnt lgkmcnt(0)')
    b = cx.dft([V(DB+2*n) for n in range(8)], -1, consts)
    a = [cx.resolve(v) for v in a]; b = [cx.resolve(v) for v in b]
    A('s_barrier')
    A.stamp(3)
    A('s_waitcnt vmcnt(0)')
    sc = 1.0/(2*2048*1024)
    A(f's_mov_b32 s42, 0x{f2u(sc):08x}')
    A(f's_mov_b32 s43, 0x{f2u(sc):08x}')
    z1 = [None]*8; z2 = [None]*8
    W1 = 74; W2 = 76; WT = 78
    A('s_cmp_eq_u32 s2, 0')
    A('s_cselect_b32 s46, 1, 0')
    for k3 in range(8):
        Av = a[k3]; Bv = b[7-k3]
        A(f'v_lshlrev_b32 v{W1}, 16, v{WR1+k3}')
        A(f'v_and_b32 v{W1+1}, 0xffff0000, v{WR1+k3}')
        A(f'v_lshlrev_b32 v{W2}, 16, v{WR2+k3}')
        A(f'v_and_b32 v{W2+1}, 0xffff0000, v{WR2+k3}')
        A('s_cmp_eq_u32 s46, 0')
        A(f's_cbranch_scc1 L_{tag}_s{k3}')
        A(f'v_lshlrev_b32 v{WT}, 16, v{WX+k3}')
        A(f'v_and_b32 v{WT+1}, 0xffff0000, v{WX+k3}')
        A(f'v_pk_add_f32 {P(W1)}, {P(W1)}, {P(WT)} neg_hi:[0,1]')
        A(f'v_pk_mul_f32 {P(W1)}, {P(W1)}, 0.5 op_sel_hi:[1,0]')
        A(f'v_lshlrev_b32 v{WT}, 16, v{WX+8+k3}')
        A(f'v_and_b32 v{WT+1}, 0xffff0000, v{WX+8+k3}')
        A(f'v_pk_add_f32 {P(W2)}, {P(W2)}, {P(WT)} neg_hi:[0,1]')
        A(f'v_pk_mul_f32 {P(W2)}, {P(W2)}, 0.5 op_sel_hi:[1,0]')
        A.label(f'L_{tag}_s{k3}')
        A(f'v_pk_mul_f32 {P(W1)}, {P(W1)}, s[42:43]')
        A(f'v_pk_mul_f32 {P(W2)}, {P(W2)}, s[42:43]')
        E = pool.get(); O = pool.get()
        A(f'v_pk_add_f32 {P(E)}, {P(Av.r)}, {P(Bv.r)} neg_hi:[0,1]')
        A(f'v_pk_add_f32 {P(O)}, {P(Av.r)}, {P(Bv.r)} neg_lo:[0,1]')
        T = cx.cmul(O, V(O), 's[44:45]')
        Pv = cx.addq(Av.r, V(E), T, 3)
        Qv = cx.addq(Bv.r, V(E), T, 1)
        Y1 = cx.cmul(Pv.r, Pv, P(W1))
        Y2 = cx.cmul(Qv.r, Qv, P(W2), conj=True)
        S1 = cx.addq(E, Y1, Y2, 0)
        D1 = cx.addq(O, Y1, Y2, 2)
        U = cx.cmul(O, D1, 's[44:45]', conj=True)
        z1[k3] = cx.addq(Av.r, S1, U, 1)
        A(f'v_pk_add_f32 {P(Bv.r)}, {P(E)}, {P(O)} op_sel:[0,1] op_sel_hi:[1,0] neg_hi:[1,0]')
        z2[7-k3] = V(Bv.r)
        pool.put(E); pool.put(O)
    A.stamp(4)
    for (z, ad) in ((z1, 11), (z2, 13)):
        y = cx.dft(z, +1, consts)
        for n3 in range(8):
            v = cx.resolve(y[n3])
            A(f'ds_write_b64 v{ad}, {P(v.r)} offset:{n3*8}')
            pool.put(v.r)
    A('s_waitcnt lgkmcnt(0)')
    A('s_barrier')
    x = []
    for k2 in range(16):
        r = pool.get()
        A(f'ds_read_b64 {P(r)}, v10 offset:{k2*16*P2P*8}')
        x.append(V(r))
    A('s_waitcnt lgkmcnt(0)')
    A('s_barrier')
    for k2 in range(16):
        x[k2] = cx.cmul(x[k2].r, x[k2], P(TW[k2]) if k2 else P(T8), conj=True)
    y = cx.dft(x, +1, consts)
    for n2 in range(16):
        v = cx.resolve(y[n2])
        A(f'ds_write_b64 v8, {P(v.r)} offset:{n2*64}')
        pool.put(v.r)
    gen_tw(A, 4, 16, TW)
    A('s_waitcnt lgkmcnt(0)')
    A('s_barrier')
    x = []
    for k1 in range(16):
        r = pool.get()
        A(f'ds_read_b64 {P(r)}, v5 offset:{k1*K1S*8}')
        x.append(V(r))
    A('v_lshlrev_b32 v3, 2, v2')
    A('s_lshl_b32 s19, s18, 13')
    A(f's_add_u32 s19, s19, {ZP_OFF}')
    A('s_waitcnt lgkmcnt(0)')
    for k1 in range(1, 16):
        x[k1] = cx.cmul(x[k1].r, x[k1], P(TW[k1]), conj=True)
    y = cx.dft(x, +1, consts)
    A.stamp(5)
    for n1 in range(16):
        v = cx.resolve(y[n1])
        A(f'v_cvt_pk_bf16_f32 v{v.r}, v{v.r}, v{v.r+1}')
        A(f'buffer_store_dword v{v.r}, v3, s[12:15], s19 offen offset:{(n1%8)*512}')
        if n1 == 7: A('s_add_u32 s19, s19, 4096')
    A.stamp(6)
    A.stamp_flush(7, 12, 0)
    A('s_endpgm')
    return 156

def role_wtr(A, tag):
    A.stamp(0)
    A('s_load_dwordx2 s[4:5], s[0:1], 8')
    A('s_load_dwordx2 s[6:7], s[0:1], 16')
    A('s_load_dwordx2 s[28:29], s[0:1], 96')
    wave_ids(A)
    A('s_and_b32 s16, s2, 31')
    A('s_lshr_b32 s17, s2, 5')
    A('s_lshl_b32 s18, s16, 6')
    A('s_lshl_b32 s19, s30, 4')
    A('s_add_u32 s19, s19, s18')
    A('s_mul_i32 s19, s19, 1026')
    A('s_lshl_b32 s31, s17, 7')
    A('s_add_u32 s19, s19, s31')
    A('v_lshlrev_b32 v7, 1, v6')
    A('s_lshl_b32 s36, s17, 6')
    A('v_add_u32 v8, s36, v6')
    A('s_waitcnt lgkmcnt(0)')
    srd(A, 8, 4, 2101248)
    srd(A, 12, 6, 2101248)
    srd(A, 32, 28, WS_BYTES)
    A('v_cmp_gt_u32 vcc, 513, v8')
    A('s_and_saveexec_b64 s[38:39], vcc')
    for r in range(16):
        A(f'buffer_load_ushort v{16+r}, v7, s[8:11], s19 offen')
        A(f'buffer_load_short_d16_hi v{32+r}, v7, s[12:15], s19 offen')
        if r < 15: A('s_add_u32 s19, s19, 1026')
    A('s_mov_b64 exec, s[38:39]')
    A('s_mul_i32 s40, s30, 16*260')
    A('v_lshlrev_b32 v9, 2, v6')
    A('v_add_u32 v9, s40, v9')
    for r in range(16):
        A(f's_waitcnt vmcnt({2*(15-r)})')
        A(f'v_or_b32 v{16+r}, v{16+r}, v{32+r}')
        A(f'ds_write_b32 v9, v{16+r} offset:{260*r}')
    A('s_waitcnt lgkmcnt(0)')
    A('s_barrier')
    A('v_mul_u32_u24 v10, 260, v6')
    A('s_lshl_b32 s41, s30, 6')
    A('v_add_u32 v10, s41, v10')
    for r in range(16):
        A(f'ds_read_b32 v{16+r}, v10 offset:{4*r}')
    A('s_lshl_b32 s42, s30, 4')
    A('s_add_u32 s42, s42, s36')
    A('s_lshl_b32 s43, s18, 2')
    A(f's_add_u32 s43, s43, {WT_OFF}')
    A('v_lshlrev_b32 v11, 2, v6')
    for r in range(16):
        A(f's_waitcnt lgkmcnt({15-r})')
        A(f's_cmp_gt_u32 s42, 512')
        A(f's_cbranch_scc1 L_{tag}_done')
        A('s_lshl_b32 s44, s42, 13')
        A('s_add_u32 s44, s44, s43')
        A(f'buffer_store_dword v{16+r}, v11, s[32:35], s44 offen')
        A('s_add_u32 s42, s42, 1')
    A.label(f'L_{tag}_done')
    A.stamp(1)
    A.stamp_flush(2, 32, 0)
    A('s_endpgm')
    return 48
```

```python
from asmlib import *
from kA import srd
from roles_c import *
from roles_b import US, UCH, KCH, sigbase, LOG2E, role_utr, role_ytr
import math
LDS_CONV2 = 2*(UCH + KCH)
KG_P = 0
KG_X = 4096
KG_T = 4096+16384
LDS_KGEN3 = KG_T + 4*1344

def role_kgen3(A, tag):
    A.stamp(0)
    A('s_load_dwordx8 s[64:71], s[0:1], 32')
    A('s_load_dwordx2 s[72:73], s[0:1], 64')
    A('s_load_dwordx2 s[80:81], s[0:1], 96')
    A('v_lshrrev_b32 v1, 6, v0')
    A('s_nop 0')
    A('v_readfirstlane_b32 s30, v1')
    A('v_and_b32 v2, 63, v0')
    A('s_lshr_b32 s28, s30, 1')
    A('s_and_b32 s29, s30, 1')
    A('s_lshl_b32 s31, s2, 1')
    A('s_add_u32 s31, s31, s28')
    A('s_waitcnt lgkmcnt(0)')
    srd(A, 8, 64, 262144)
    srd(A, 12, 66, 262144)
    srd(A, 20, 68, 262144)
    srd(A, 24, 70, 262144)
    srd(A, 32, 72, 2048)
    srd(A, 44, 80, WS_BYTES)
    A('v_lshlrev_b32 v3, 1, v2')
    A('s_lshl_b32 s48, s31, 8')
    A('s_lshl_b32 s49, s29, 7')
    A('s_add_u32 s48, s48, s49')
    A('s_lshl_b32 s49, s31, 1')
    A('v_mov_b32 v4, 0')
    A('buffer_load_short_d16_hi v24, v3, s[8:11], s48 offen')
    A('buffer_load_short_d16_hi v25, v3, s[12:15], s48 offen')
    A('buffer_load_short_d16_hi v26, v3, s[20:23], s48 offen')
    A('buffer_load_short_d16_hi v27, v3, s[24:27], s48 offen')
    A('buffer_load_short_d16_hi v14, v4, s[32:35], s49 offen')
    A('s_lshl_b32 s51, s30, 10')
    A('v_lshlrev_b32 v7, 4, v2')
    A('v_add_u32 v7, s51, v7')
    A('v_and_b32 v16, 15, v2')
    A('v_lshrrev_b32 v17, 4, v2')
    A('v_cvt_f32_u32 v18, v16')
    A(f'v_mul_f32 v19, 0x{f2u(16.0):08x}, v18')
    A('v_cmp_eq_u32 s[54:55], 0, v16')
    A(f'v_mov_b32 v20, 0x{f2u(256.0):08x}')
    A('s_nop 0')
    A('v_cndmask_b32 v19, v19, v20, s[54:55]')
    A('v_lshlrev_b32 v21, 6, v17')
    A('v_add_u32 v21, s51, v21')
    ACC = [32 + 4*h for h in range(4)]
    for r in range(32, 48): A(f'v_mov_b32 v{r}, 0')
    A('s_waitcnt vmcnt(0)')
    A(f'v_mul_f32 v14, 0x{f2u(LOG2E):08x}, v14')
    A('v_exp_f32 v14, v14')
    A(f'v_mul_f32 v24, 0x{f2u(LOG2E):08x}, v24')
    A('v_exp_f32 v24, v24')
    A('v_cvt_pk_bf16_f32 v14, v14, v14')
    A('v_lshlrev_b32 v14, 16, v14')
    A('v_cvt_pk_bf16_f32 v24, v24, v24')
    A('v_lshlrev_b32 v24, 16, v24')
    A('v_mul_f32 v25, v25, v14')
    A('v_mul_f32 v24, v24, v14')
    A(f'v_mul_f32 v24, 0x{f2u(-LOG2E):08x}, v24')
    A(f'v_mul_f32 v25, 0x{f2u(1/(2*math.pi)):08x}, v25')
    A('v_add_f32 v14, v14, v14')
    A('v_mul_f32 v26, v26, v14')
    A('v_mul_f32 v27, v27, v14')
    A('ds_write_b128 v7, v[24:27]')
    A.stamp(1)
    GF = [48 + 4*h for h in range(4)]
    EF = [64 + 4*h for h in range(4)]
    PR = 80
    pool = Pool(96, 8)
    cx = Cx(A, pool)
    A('s_mov_b32 s56, 0')
    A.label(f'L_{tag}_kg')
    for q in range(4):
        A(f'ds_read_b128 v[{PR+4*q}:{PR+4*q+3}], v21 offset:{16*q}')
    A('v_add_u32 v21, 256, v21')
    for q in range(4):
        A(f's_waitcnt lgkmcnt({3-q})')
        p = PR + 4*q
        E = pool.get(); F = pool.get(); t = pool.get()
        for (Z, fl) in ((E, 18), (F, 19)):
            A(f'v_mul_f32 v{t}, v{p}, v{fl}')
            A(f'v_mul_f32 v{t+1}, v{p+1}, v{fl}')
            A(f'v_exp_f32 v{t}, v{t}')
            A(f'v_fract_f32 v{t+1}, v{t+1}')
            A(f'v_cos_f32 v{Z}, v{t+1}')
            A(f'v_sin_f32 v{Z+1}, v{t+1}')
            A('s_nop 0')
            A(f'v_pk_mul_f32 {P(Z)}, {P(Z)}, {P(t)} op_sel_hi:[1,0]')
        G = cx.cmul(t, V(F), P(p+2))
        for h in range(4):
            A(f'v_cvt_pk_bf16_f32 v{EF[h]+q}, v{E}, v{E+1}')
            if h == 0:
                t3 = pool.get()
                A(f'v_cndmask_b32 v{t3}, v{t}, v{p+2}, s[54:55]')
                A(f'v_cndmask_b32 v{t3+1}, v{t+1}, v{p+3}, s[54:55]')
                A(f'v_cvt_pk_bf16_f32 v{GF[h]+q}, v{t3}, -v{t3+1}')
                pool.put(t3)
            else:
                A(f'v_cvt_pk_bf16_f32 v{GF[h]+q}, v{t}, -v{t+1}')
            if h < 3:
                G = cx.cmul(t, V(t), P(F))
                for Z in ((E, F) if h < 2 else (E,)):
                    t2 = pool.get()
                    A(f'v_pk_mul_f32 {P(t2)}, {P(Z)}, {P(Z)} op_sel:[0,0] op_sel_hi:[0,1]')
                    A(f'v_pk_fma_f32 {P(Z)}, {P(Z)}, {P(Z)}, {P(t2)} op_sel:[1,1,0] op_sel_hi:[0,1,1] neg_lo:[0,1,0]')
                    pool.put(t2)
        pool.put(E); pool.put(F); pool.put(t)
    A('s_nop 1')
    for h in range(4):
        A(f'v_mfma_f32_16x16x32_bf16 v[{ACC[h]}:{ACC[h]+3}], v[{GF[h]}:{GF[h]+3}], v[{EF[h]}:{EF[h]+3}], v[{ACC[h]}:{ACC[h]+3}]')
    A('s_add_u32 s56, s56, 1')
    A('s_cmp_lt_u32 s56, 4')
    A(f's_cbranch_scc1 L_{tag}_kg')
    A.stamp(2)
    A('s_lshl_b32 s52, s30, 12')
    A(f's_add_u32 s52, s52, {KG_X}')
    A('s_xor_b32 s53, s30, 1')
    A('s_lshl_b32 s53, s53, 12')
    A(f's_add_u32 s53, s53, {KG_X}')
    A('v_lshlrev_b32 v5, 4, v2')
    A('v_add_u32 v6, s52, v5')
    A('v_add_u32 v8, s53, v5')
    A(f's_mul_i32 s58, s30, 1344')
    A(f's_add_u32 s58, s58, {KG_T}')
    A('v_lshlrev_b32 v22, 7, v17')
    A('v_lshl_add_u32 v22, v16, 1, v22')
    A('v_add_u32 v22, s58, v22')
    A('s_nop 3')
    for h in range(4):
        A(f'ds_write_b128 v6, v[{ACC[h]}:{ACC[h]+3}] offset:{1024*h}')
    A('s_waitcnt lgkmcnt(0)')
    A('s_barrier')
    for h in range(4):
        A(f'ds_read_b128 v[{48+4*h}:{51+4*h}], v8 offset:{1024*h}')
    for h in range(4):
        A(f's_waitcnt lgkmcnt({3-h})')
        for r in range(4):
            A(f'v_add_f32 v{ACC[h]+r}, v{ACC[h]+r}, v{48+4*h+r}')
            A(f'v_cvt_pk_bf16_f32 v{ACC[h]+r}, v{ACC[h]+r}, v{ACC[h]+r}')
    for r in range(4):
        A(f'ds_write_b16 v22, v{ACC[0]+r} offset:{32*r}')
    A('s_mov_b32 exec_lo, 0')
    for h in range(1, 4):
        for r in range(4):
            A(f'ds_write_b16 v22, v{ACC[h]+r} offset:{32*r + 256*h}')
    A('s_mov_b64 exec, 1')
    A(f'ds_write_b16 v22, v{ACC[3]} offset:1280')
    A('s_mov_b64 exec, -1')
    A(f's_sub_u32 s59, s58, {2*(0x4380-256)}')
    A('v_lshlrev_b32 v24, 2, v2')
    A('s_lshl_b32 s24, s29, 8')
    A('v_add_u32 v24, s24, v24')
    A('v_cvt_f32_u32 v23, v24')
    G0 = 48; G1 = 64
    for i in range(5):
        if i == 0:
            for e in range(4):
                r = (G0 if e % 2 == 0 else G1) + 2*i + e//2
                A(f'v_add_u32 v25, {-32+e}, v24')
                A('v_max_i32 v25, 0, v25')
                A('v_cvt_f32_u32 v27, v25')
                A('v_cvt_pk_bf16_f32 v27, v27, v27')
                A('v_and_b32 v27, 0xffff, v27')
                A(f'v_subrev_u32 v27, {0x4380-256}, v27')
                A('v_cmp_gt_u32 vcc, 128, v25')
                A('s_nop 1')
                A('v_cndmask_b32 v25, v27, v25, vcc')
                A('v_lshl_add_u32 v25, v25, 1, s58')
                op = 'ds_read_u16_d16' if e % 2 == 0 else 'ds_read_u16_d16_hi'
                A(f'{op} v{r}, v25')
        else:
            for e2 in range(2):
                A(f'v_add_f32 v25, 0x{f2u(float(512*i-32+2*e2)):08x}, v23')
                A(f'v_add_f32 v26, 0x{f2u(float(512*i-32+2*e2+1)):08x}, v23')
                if i == 4:
                    A(f'v_min_f32 v25, 0x{f2u(2047.0):08x}, v25')
                    A(f'v_min_f32 v26, 0x{f2u(2047.0):08x}, v26')
                A('v_cvt_pk_bf16_f32 v25, v25, v26')
                A('v_lshrrev_b32 v26, 16, v25')
                A('v_and_b32 v25, 0xffff, v25')
                A('v_lshl_add_u32 v25, v25, 1, s59')
                A('v_lshl_add_u32 v26, v26, 1, s59')
                A(f'ds_read_u16_d16 v{G0+2*i+e2}, v25')
                A(f'ds_read_u16_d16_hi v{G1+2*i+e2}, v26')
    A('s_waitcnt lgkmcnt(0)')
    for r in range(10): A(f'v_or_b32 v{G0+r}, v{G0+r}, v{G1+r}')
    A('v_cmp_gt_u32 vcc, 32, v24')
    A('s_nop 1')
    A(f'v_cndmask_b32_e64 v{G0}, v{G0}, 0, vcc')
    A(f'v_cndmask_b32_e64 v{G0+1}, v{G0+1}, 0, vcc')
    A('v_lshlrev_b32 v26, 3, v2')
    A('s_mul_i32 s49, s31, 4224')
    A(f's_add_u32 s49, s49, {KT_OFF}')
    A('s_lshl_b32 s25, s29, 9')
    A('s_add_u32 s49, s49, s25')
    for i in range(4):
        A(f'buffer_store_dwordx2 v[{G0+2*i}:{G0+2*i+1}], v26, s[44:47], s49 offen offset:{1024*i}')
    A('s_cmp_eq_u32 s29, 1')
    A(f's_cbranch_scc1 L_{tag}_done')
    A('s_add_u32 s49, s49, 4096')
    A('s_mov_b64 exec, 0xff')
    A(f'buffer_store_dwordx2 v[{G0+8}:{G0+9}], v26, s[44:47], s49 offen')
    A('s_mov_b64 exec, -1')
    A.label(f'L_{tag}_done')
    A.stamp(3)
    A.stamp_flush(4, 44, 0)
    A('s_endpgm')
    return 112

def role_conv4(A, tag):
    A.stamp(0)
    A('s_load_dwordx2 s[76:77], s[0:1], 72')
    A('s_load_dwordx2 s[80:81], s[0:1], 96')
    A('v_lshrrev_b32 v1, 6, v0')
    A('s_nop 0')
    A('v_readfirstlane_b32 s30, v1')
    A('v_and_b32 v2, 63, v0')
    A('s_lshr_b32 s26, s30, 1')
    A('s_and_b32 s27, s30, 1')
    A('s_lshl_b32 s31, s2, 1')
    A('s_add_u32 s31, s31, s26')
    A(f's_mul_i32 s48, s26, {UCH+KCH}')
    A(f's_add_u32 s59, s48, {UCH}')
    A('s_waitcnt lgkmcnt(0)')
    srd(A, 36, 76, 2048)
    srd(A, 44, 80, WS_BYTES)
    A('v_lshlrev_b32 v3, 4, v2')
    A('s_lshl_b32 s49, s31, 12')
    A('s_lshl_b32 s24, s27, 11')
    A('s_add_u32 s49, s49, s24')
    A(f's_add_u32 s50, s49, {UT_OFF}')
    UR = 112
    for i in range(2):
        A(f'buffer_load_dwordx4 v[{UR+4*i}:{UR+4*i+3}], v3, s[44:47], s50 offen offset:{1024*i}')
    G0 = 64
    A('v_lshlrev_b32 v26, 3, v2')
    A('s_mul_i32 s51, s31, 4224')
    A(f's_add_u32 s51, s51, {KT_OFF}')
    A('s_lshl_b32 s25, s27, 9')
    A('s_add_u32 s51, s51, s25')
    A('s_add_u32 s52, s51, 4096')
    for i in range(5):
        sr = 51 if i < 4 else 52
        A(f'buffer_load_dwordx4 v[{G0+4*i}:{G0+4*i+3}], v26, s[44:47], s{sr} offen offset:{1024*(i%4)}')
    A('v_mov_b32 v4, 0')
    A('s_lshl_b32 s53, s31, 1')
    A('buffer_load_ushort v15, v4, s[36:39], s53 offen')
    A('v_mov_b32 v20, 0'); A('v_mov_b32 v21, 0'); A('v_mov_b32 v22, 0'); A('v_mov_b32 v23, 0')
    A('s_mul_i32 s24, s27, 1280')
    A('s_add_u32 s24, s24, s48')
    A('v_add_u32 v6, s24, v3')
    A('ds_write_b128 v6, v[20:23]')
    A('s_mov_b64 exec, 0xffff')
    A('ds_write_b128 v6, v[20:23] offset:1024')
    A('s_mov_b64 exec, -1')
    A('v_lshrrev_b32 v7, 2, v2')
    A(f'v_mul_u32_u24 v7, {US}, v7')
    A('v_and_b32 v8, 3, v2')
    A('v_lshl_add_u32 v7, v8, 4, v7')
    A(f's_mul_i32 s24, s27, {32*US}')
    A('s_add_u32 s22, s24, s48')
    A('v_add_u32 v9, s22, v7')
    A('s_add_u32 s23, s59, s25')
    A('v_add_u32 v23, s23, v26')
    for i in range(2):
        A(f's_waitcnt vmcnt({6+1-i})')
        A(f'ds_write_b128 v9, v[{UR+4*i}:{UR+4*i+3}] offset:{(32+16*i)*US}')
    for i in range(5):
        if i == 4:
            A('s_cmp_eq_u32 s27, 1')
            A(f's_cbranch_scc1 L_{tag}_kdone')
        A(f's_waitcnt vmcnt({1+(4-i)})')
        d0, d1, d2, d3 = G0+4*i, G0+4*i+1, G0+4*i+2, G0+4*i+3
        if i == 4: A('s_mov_b64 exec, 0xff')
        A(f'ds_write_b64 v23, v[{d0}:{d1}] offset:{1024*i}')
        if i == 4: A('s_mov_b64 exec, 0x7f')
        A(f'v_alignbit_b32 v26, v{d1}, v{d0}, 16')
        A(f'v_alignbit_b32 v27, v{d2}, v{d1}, 16')
        A(f'v_mov_b32 v28, v27')
        A(f'v_alignbit_b32 v29, v{d3}, v{d2}, 16')
        A(f'ds_write_b64 v23, v[26:27] offset:{1024*i + sigbase(1)}')
        A(f'v_mov_b32 v30, v{d1}')
        A(f'v_mov_b32 v31, v{d2}')
        A(f'ds_write_b64 v23, v[30:31] offset:{1024*i + sigbase(2)}')
        A(f'ds_write_b64 v23, v[28:29] offset:{1024*i + sigbase(3)}')
    A('s_mov_b64 exec, -1')
    A.label(f'L_{tag}_kdone')
    A.stamp(1)
    A('v_and_b32 v16, 31, v2')
    A('v_lshrrev_b32 v17, 5, v2')
    A('v_add_u32 v18, 1, v16')
    A('v_and_b32 v18, 3, v18')
    A('v_mul_u32_u24 v19, 4160, v18')
    A('v_cmp_lt_u32 vcc, 0, v18')
    A('s_nop 1')
    A('v_cndmask_b32_e64 v20, 0, 8, vcc')
    A('v_add_u32 v19, v19, v20')
    A('v_lshlrev_b32 v20, 3, v17')
    A('v_sub_u32 v21, v16, v20')
    A('v_sub_u32 v21, v21, v18')
    A('v_add_u32 v21, 9, v21')
    A('v_lshl_add_u32 v19, v21, 1, v19')
    A('s_lshl_b32 s24, s27, 5')
    A('s_sub_u32 s22, s59, s24')
    A('v_add_u32 v19, s22, v19')
    A(f'v_mul_u32_u24 v20, {US}, v16')
    A('v_lshl_add_u32 v20, v17, 4, v20')
    A(f'v_add_u32 v20, {US}, v20')
    A('s_add_u32 s22, s48, s24')
    A('v_add_u32 v20, s22, v20')
    C0 = 32; C1 = 48
    for r in range(32, 64): A(f'v_mov_b32 v{r}, 0')
    A('s_waitcnt lgkmcnt(0)')
    A('s_barrier')
    import roles_f
    NB = roles_f.OPT.get('nb', 4); FR = 64
    def issue(m):
        b = FR + 12*(m % NB)
        A(f'ds_read_b64 v[{b}:{b+1}], v19 offset:{32*(2*m+1)}')
        A(f'ds_read_b64 v[{b+2}:{b+3}], v19 offset:{32*(2*m+1)+8}')
        n = 2
        if m < 32:
            A(f'ds_read_b128 v[{b+4}:{b+7}], v20 offset:{(-m+31)*US}'); n += 1
        A(f'ds_read_b128 v[{b+8}:{b+11}], v20 offset:{(32-m+31)*US}'); n += 1
        return n
    cnt = []
    for k in range(NB-1): cnt.append(issue(k))
    for m in range(64):
        if m + NB - 1 < 64: cnt.append(issue(m+NB-1))
        pend = sum(cnt[m+1:])
        A(f's_waitcnt lgkmcnt({min(pend,15)})')
        b = FR + 12*(m % NB)
        if m < 32:
            A(f'v_mfma_f32_32x32x16_bf16 v[{C0}:{C0+15}], v[{b}:{b+3}], v[{b+4}:{b+7}], v[{C0}:{C0+15}]')
        A(f'v_mfma_f32_32x32x16_bf16 v[{C1}:{C1+15}], v[{b}:{b+3}], v[{b+8}:{b+11}], v[{C1}:{C1+15}]')
    A.stamp(2)
    A(f'v_mul_u32_u24 v21, {US}, v16')
    A('v_lshlrev_b32 v22, 3, v17')
    A('v_add_u32 v24, v21, v22')
    A('v_sub_u32 v21, v21, v22')
    A(f'v_add_u32 v21, {32*US+8}, v21')
    A(f's_mul_i32 s24, s27, {32*US}')
    A('s_add_u32 s22, s48, s24')
    A('v_add_u32 v21, s22, v21')
    UE = 64
    for q in range(4):
        A(f'ds_read_b64 v[{UE+2*q}:{UE+2*q+1}], v21 offset:{16*q}')
    A('s_lshl_b32 s24, s27, 12')
    A('s_add_u32 s22, s59, s24')
    A('v_add_u32 v25, s22, v3')
    A('s_xor_b32 s24, s24, 4096')
    A('s_add_u32 s22, s59, s24')
    A('v_add_u32 v26, s22, v3')
    A('s_barrier')
    A('s_cmp_eq_u32 s27, 0')
    A(f's_cbranch_scc1 L_{tag}_noswap')
    for r in range(16):
        A(f'v_swap_b32 v{C0+r}, v{C1+r}')
    A.label(f'L_{tag}_noswap')
    for q in range(4):
        A(f'ds_write_b128 v25, v[{C1+4*q}:{C1+4*q+3}] offset:{1024*q}')
    A('s_waitcnt lgkmcnt(0)')
    A('s_barrier')
    for q in range(4):
        A(f'ds_read_b128 v[{C1+4*q}:{C1+4*q+3}], v26 offset:{1024*q}')
    A('s_waitcnt vmcnt(0)')
    A('v_lshlrev_b32 v15, 16, v15')
    A('s_mul_i32 s24, s27, 2560')
    A('s_add_u32 s24, s24, s59')
    A('s_add_u32 s24, s24, 8192')
    A('v_add_u32 v24, s24, v24')
    A('v_add_u32 v7, s24, v7')
    for q in range(4):
        A(f's_waitcnt lgkmcnt({3-q})')
        ur = UE + 2*q
        for e in range(4):
            pos = 3 - e
            src = ur + pos//2
            o = 26 + e
            A(f'v_add_f32 v{C0+4*q+e}, v{C0+4*q+e}, v{C1+4*q+e}')
            if pos % 2 == 0: A(f'v_lshlrev_b32 v{o}, 16, v{src}')
            else: A(f'v_and_b32 v{o}, 0xffff0000, v{src}')
            A(f'v_mul_f32 v{o}, v{o}, v15')
            A(f'v_cvt_pk_bf16_f32 v{o}, v{o}, v{C0+4*q+e}')
            A(f'v_lshlrev_b32 v25, 16, v{o}')
            A(f'v_and_b32 v{o}, 0xffff0000, v{o}')
            A(f'v_add_f32 v{o}, v{o}, v25')
        A('v_cvt_pk_bf16_f32 v30, v26, v27')
        A('v_cvt_pk_bf16_f32 v31, v28, v29')
        A(f'ds_write_b64 v24, v[30:31] offset:{16*q}')
    for i in range(2):
        A(f'ds_read_b128 v[{UR+4*i}:{UR+4*i+3}], v7 offset:{16*i*US}')
    A(f's_add_u32 s50, s49, {YT_OFF}')
    for i in range(2):
        A(f's_waitcnt lgkmcnt({1-i})')
        A(f'buffer_store_dwordx4 v[{UR+4*i}:{UR+4*i+3}], v3, s[44:47], s50 offen offset:{1024*i}')
    A.stamp(3)
    A.stamp_flush(4, 44, 0)
    A('s_endpgm')
    return 128
```

```python
from asmlib import *
from kA import srd, gen_tw
from roles_c import *

def role_col2(A, tag):
    A.stamp(0)
    A('s_load_dwordx2 s[28:29], s[0:1], 96')
    xmap4(A)
    consts = emit_w16_consts(A, 20)
    A('v_lshrrev_b32 v1, 7, v0')
    A('v_and_b32 v2, 127, v0')
    A('s_nop 0')
    A('v_readfirstlane_b32 s30, v1')
    A('s_sub_u32 s16, 512, s2')
    A('s_cmp_eq_u32 s2, 0')
    A('s_cselect_b32 s46, 1, 0')
    A('s_cselect_b32 s17, 256, s16')
    A('s_cmp_eq_u32 s30, 0')
    A('s_cselect_b32 s18, s2, s17')
    A('s_lshr_b32 s19, s18, 2')
    A(f's_mul_i32 s19, s19, {CPS}')
    A('s_and_b32 s31, s18, 3')
    A('s_lshl_b32 s31, s31, 2')
    A('s_add_u32 s19, s19, s31')
    A(f's_add_u32 s19, s19, {ZR_OFF}')
    A('v_lshlrev_b32 v3, 4, v2')
    A('s_waitcnt lgkmcnt(0)')
    srd(A, 12, 28, WS_BYTES)
    pool = Pool(80, 30)
    cx = Cx(A, pool)
    x = []
    for n1 in range(16):
        r = pool.get()
        A(f'buffer_load_dword v{r+1}, v3, s[12:15], s19 offen offset:{(n1%2)*2048}')
        if n1 % 2 == 1 and n1 < 15: A('s_add_u32 s19, s19, 4096')
        x.append(V(r))
    WR1 = 140; WR2 = 148; WX = 20
    A('v_lshlrev_b32 v14, 2, v0')
    A('v_sub_u32 v15, 1024, v14')
    A('v_sub_u32 v16, 8192, v14')
    A('v_and_b32 v16, 8191, v16')
    def wloads(dst1, dst2, c1, c2):
        if dst1 is not None:
            for k3 in range(8):
                A(f'buffer_load_dword v{dst1+k3}, v14, s[12:15], s{c1 if k3 < 4 else c1+1} offen offset:{1024*(k3%4)}')
        if dst2 is not None:
            A(f'buffer_load_dword v{dst2}, v16, s[12:15], s{c2} offen')
            for k3 in range(1, 8):
                kk = 7 - k3
                A(f'buffer_load_dword v{dst2+k3}, v15, s[12:15], s{c2 if kk < 4 else c2+1} offen offset:{1024*(kk%4)}')
    A('s_lshl_b32 s36, s2, 13')
    A(f's_add_u32 s36, s36, {WT_OFF}')
    A('s_add_u32 s37, s36, 4096')
    A('s_lshl_b32 s38, s16, 13')
    A(f's_add_u32 s38, s38, {WT_OFF}')
    A('s_add_u32 s39, s38, 4096')
    wloads(WR1, WR2, 36, 38)
    A('s_cmp_eq_u32 s46, 0')
    A(f's_cbranch_scc1 L_{tag}_nox')
    wloads(WX+8, WX, 38, 36)
    A.label(f'L_{tag}_nox')
    TW = {k: 40 + 2*k for k in range(16)}
    A('v_cvt_f32_u32 v4, v2')
    A(f'v_mul_f32 v4, 0x{f2u(1/2048):08x}, v4')
    gen_tw(A, 4, 16, TW)
    A(f'v_mul_u32_u24 v9, {CS1}, v1')
    A('v_add_u32 v5, v9, v2')
    A('v_lshlrev_b32 v5, 3, v5')
    A('v_lshrrev_b32 v6, 3, v2')
    A('v_and_b32 v7, 7, v2')
    A(f'v_mul_u32_u24 v8, {K1S}, v6')
    A('v_add3_u32 v8, v8, v9, v7')
    A('v_lshlrev_b32 v8, 3, v8')
    A(f'v_mul_u32_u24 v9, {CS2}, v1')
    A(f'v_mul_u32_u24 v10, {P2P}, v6')
    A('v_add3_u32 v10, v10, v9, v7')
    A('v_lshlrev_b32 v10, 3, v10')
    A(f'v_mul_u32_u24 v11, {P2P*8}, v0')
    A('v_sub_u32 v13, 256, v0')
    A('v_and_b32 v13, 255, v13')
    A(f'v_mul_u32_u24 v13, {P2P*8}, v13')
    A(f's_mov_b32 s47, {CS2*8}')
    A('s_cmp_eq_u32 s46, 1')
    A('s_cselect_b32 s47, 0, s47')
    A('v_add_u32 v13, s47, v13')
    A('v_cvt_f32_u32 v12, v7')
    T8 = 72
    A(f'v_mul_f32 v17, 0x{f2u(1/8):08x}, v12')
    A('v_add_u32 v18, -128, v0')
    A('s_lshl_b32 s47, s46, 3')
    A('s_sub_u32 s47, 8, s47')
    A('v_cmp_gt_u32 vcc, s47, v18')
    A('s_nop 1')
    A('v_cndmask_b32 v17, 0, v17, vcc')
    A(f'v_cos_f32 v{T8}, v17')
    A(f'v_sin_f32_e64 v{T8+1}, -v17')
    A(f'v_mul_f32 v12, 0x{f2u(1/128):08x}, v12')
    A('v_cvt_f32_u32 v17, s2')
    A(f'v_mul_f32 v17, 0x{f2u(1/1024):08x}, v17')
    A('v_cos_f32 v18, v17')
    A('v_sin_f32_e64 v19, -v17')
    A('s_nop 0')
    A('v_readfirstlane_b32 s44, v18')
    A('v_readfirstlane_b32 s45, v19')
    A.stamp(1)
    A('s_waitcnt vmcnt(16)')
    A.stamp(2)
    for v in x:
        A(f'v_lshlrev_b32 v{v.r}, 16, v{v.r+1}')
        A(f'v_and_b32 v{v.r+1}, 0xffff0000, v{v.r+1}')
    y = cx.dft(x, -1, consts)
    for k1 in range(16):
        v = y[k1]
        if k1: v = cx.cmul(v.r, v, P(TW[k1]))
        v = cx.resolve(v)
        A(f'ds_write_b64 v5, {P(v.r)} offset:{k1*K1S*8}')
        pool.put(v.r)
    gen_tw(A, 12, 16, TW)
    A('s_waitcnt lgkmcnt(0)')
    A('s_barrier')
    x = []
    for n2 in range(16):
        r = pool.get()
        A(f'ds_read_b64 {P(r)}, v8 offset:{n2*64}')
        x.append(V(r))
    A('s_waitcnt lgkmcnt(0)')
    A('s_barrier')
    y = cx.dft(x, -1, consts)
    for k2 in range(16):
        v = y[k2]
        if k2: v = cx.cmul(v.r, v, P(TW[k2]))
        else: v = cx.cmul(v.r, v, P(T8))
        v = cx.resolve(v)
        A(f'ds_write_b64 v10, {P(v.r)} offset:{k2*16*P2P*8}')
        pool.put(v.r)
    A('s_waitcnt lgkmcnt(0)')
    A('s_barrier')
    sc = 1.0/(2*2048*1024)
    A(f's_mov_b32 s42, 0x{f2u(sc):08x}')
    A(f's_mov_b32 s43, 0x{f2u(sc):08x}')
    A('s_mov_b32 s48, s46')
    DA = 100; DB = 116
    pool.free = [r for r in pool.free if not (100 <= r < 132)]
    free0 = list(pool.free)
    A.label(f'L_{tag}_st3')
    for (ad, base) in ((11, DA), (13, DB)):
        for q in range(4):
            A(f'ds_read_b128 v[{base+4*q}:{base+4*q+3}], v{ad} offset:{16*q}')
    A('s_waitcnt lgkmcnt(4)')
    a = cx.dft([V(DA+2*n) for n in range(8)], -1, consts)
    A('s_waitcnt lgkmcnt(0)')
    b = cx.dft([V(DB+2*n) for n in range(8)], -1, consts)
    a = [cx.resolve(v) for v in a]; b = [cx.resolve(v) for v in b]
    A('s_barrier')
    A.stamp(3)
    A('s_cmp_eq_u32 s46, 0')
    A(f's_cbranch_scc1 L_{tag}_norot')
    A('v_cmp_eq_u32 vcc, 0, v0')
    A('s_and_saveexec_b64 s[50:51], vcc')
    A(f'v_mov_b32 v74, v{b[0].r}'); A(f'v_mov_b32 v75, v{b[0].r+1}')
    for i in range(7):
        A(f'v_mov_b32 v{b[i].r}, v{b[i+1].r}'); A(f'v_mov_b32 v{b[i].r+1}, v{b[i+1].r+1}')
    A(f'v_mov_b32 v{b[7].r}, v74'); A(f'v_mov_b32 v{b[7].r+1}, v75')
    A('s_mov_b64 exec, s[50:51]')
    A.label(f'L_{tag}_norot')
    A('s_waitcnt vmcnt(0)')
    z1 = [None]*8; z2 = [None]*8
    W1 = 74; W2 = 76; WT = 78
    for k3 in range(8):
        Av = a[k3]; Bv = b[7-k3]
        A(f'v_lshlrev_b32 v{W1}, 16, v{WR1+k3}')
        A(f'v_and_b32 v{W1+1}, 0xffff0000, v{WR1+k3}')
        A(f'v_lshlrev_b32 v{W2}, 16, v{WR2+k3}')
        A(f'v_and_b32 v{W2+1}, 0xffff0000, v{WR2+k3}')
        A('s_cmp_eq_u32 s48, 0')
        A(f's_cbranch_scc1 L_{tag}_s{k3}')
        A(f'v_lshlrev_b32 v{WT}, 16, v{WX+k3}')
        A(f'v_and_b32 v{WT+1}, 0xffff0000, v{WX+k3}')
        A(f'v_pk_add_f32 {P(W1)}, {P(W1)}, {P(WT)} neg_hi:[0,1]')
        A(f'v_pk_mul_f32 {P(W1)}, {P(W1)}, 0.5 op_sel_hi:[1,0]')
        A(f'v_lshlrev_b32 v{WT}, 16, v{WX+8+k3}')
        A(f'v_and_b32 v{WT+1}, 0xffff0000, v{WX+8+k3}')
        A(f'v_pk_add_f32 {P(W2)}, {P(W2)}, {P(WT)} neg_hi:[0,1]')
        A(f'v_pk_mul_f32 {P(W2)}, {P(W2)}, 0.5 op_sel_hi:[1,0]')
        A.label(f'L_{tag}_s{k3}')
        A(f'v_pk_mul_f32 {P(W1)}, {P(W1)}, s[42:43]')
        A(f'v_pk_mul_f32 {P(W2)}, {P(W2)}, s[42:43]')
        E = pool.get(); O = pool.get()
        A(f'v_pk_add_f32 {P(E)}, {P(Av.r)}, {P(Bv.r)} neg_hi:[0,1]')
        A(f'v_pk_add_f32 {P(O)}, {P(Av.r)}, {P(Bv.r)} neg_lo:[0,1]')
        T = cx.cmul(O, V(O), 's[44:45]')
        Pv = cx.addq(Av.r, V(E), T, 3)
        Qv = cx.addq(Bv.r, V(E), T, 1)
        Y1 = cx.cmul(Pv.r, Pv, P(W1))
        Y2 = cx.cmul(Qv.r, Qv, P(W2), conj=True)
        S1 = cx.addq(E, Y1, Y2, 0)
        D1 = cx.addq(O, Y1, Y2, 2)
        U = cx.cmul(O, D1, 's[44:45]', conj=True)
        z1[k3] = cx.addq(Av.r, S1, U, 1)
        A(f'v_pk_add_f32 {P(Bv.r)}, {P(E)}, {P(O)} op_sel:[0,1] op_sel_hi:[1,0] neg_hi:[1,0]')
        z2[7-k3] = V(Bv.r)
        pool.put(E); pool.put(O)
    A.stamp(4)
    A('s_cmp_eq_u32 s48, 0')
    A(f's_cbranch_scc1 L_{tag}_nopf')
    A(f's_mov_b32 s36, {WT_OFF + 256*8192}')
    A(f's_mov_b32 s37, {WT_OFF + 256*8192 + 4096}')
    wloads(WR1, WR2, 36, 36)
    A.label(f'L_{tag}_nopf')
    y = cx.dft(z1, +1, consts)
    for n3 in range(8):
        v = cx.resolve(y[n3])
        A(f'ds_write_b64 v11, {P(v.r)} offset:{n3*8}')
        pool.put(v.r)
    A('s_cmp_eq_u32 s46, 1')
    A(f's_cbranch_scc1 L_{tag}_mnext')
    y = cx.dft(z2, +1, consts)
    for n3 in range(8):
        v = cx.resolve(y[n3])
        A(f'ds_write_b64 v13, {P(v.r)} offset:{n3*8}')
        pool.put(v.r)
    A(f's_branch L_{tag}_st3done')
    A.label(f'L_{tag}_mnext')
    A('s_cmp_eq_u32 s48, 0')
    A(f's_cbranch_scc1 L_{tag}_st3done')
    A('s_mov_b32 s48, 0')
    A(f'v_add_u32 v11, {CS2*8}, v11')
    A(f'v_add_u32 v13, {CS2*8}, v13')
    A('s_mov_b32 s44, 0')
    A('s_mov_b32 s45, -1.0')
    A(f's_branch L_{tag}_st3')
    A.label(f'L_{tag}_st3done')
    pool.free = sorted(set(range(80, 140, 2)))
    A('s_waitcnt lgkmcnt(0)')
    A('s_barrier')
    x = []
    for k2 in range(16):
        r = pool.get()
        A(f'ds_read_b64 {P(r)}, v10 offset:{k2*16*P2P*8}')
        x.append(V(r))
    A('s_waitcnt lgkmcnt(0)')
    A('s_barrier')
    for k2 in range(16):
        x[k2] = cx.cmul(x[k2].r, x[k2], P(TW[k2]) if k2 else P(T8), conj=True)
    y = cx.dft(x, +1, consts)
    for n2 in range(16):
        v = cx.resolve(y[n2])
        A(f'ds_write_b64 v8, {P(v.r)} offset:{n2*64}')
        pool.put(v.r)
    gen_tw(A, 4, 16, TW)
    A('s_waitcnt lgkmcnt(0)')
    A('s_barrier')
    x = []
    for k1 in range(16):
        r = pool.get()
        A(f'ds_read_b64 {P(r)}, v5 offset:{k1*K1S*8}')
        x.append(V(r))
    A('v_lshlrev_b32 v3, 2, v2')
    A('s_lshl_b32 s19, s18, 13')
    A(f's_add_u32 s19, s19, {ZP_OFF}')
    A('s_waitcnt lgkmcnt(0)')
    for k1 in range(1, 16):
        x[k1] = cx.cmul(x[k1].r, x[k1], P(TW[k1]), conj=True)
    y = cx.dft(x, +1, consts)
    A.stamp(5)
    for n1 in range(16):
        v = cx.resolve(y[n1])
        A(f'v_cvt_pk_bf16_f32 v{v.r}, v{v.r}, v{v.r+1}')
        A(f'buffer_store_dword v{v.r}, v3, s[12:15], s19 offen offset:{(n1%8)*512}')
        if n1 == 7: A('s_add_u32 s19, s19, 4096')
    A.stamp(6)
    A.stamp_flush(7, 12, 0)
    A('s_endpgm')
    return 156
```

```python
from asmlib import *
from kA import srd, gen_tw
from roles_c import *

LDS_ROW2 = 4*RS

def row_setup1(A, T1, T2):
    A('v_cvt_f32_u32 v10, v6')
    A(f'v_mul_f32 v11, 0x{f2u(1/512):08x}, v10')
    gen_tw(A, 11, 8, T1)
    A('v_and_b32 v12, 7, v6')
    A('v_lshrrev_b32 v13, 3, v6')
    A('v_cvt_f32_u32 v14, v12')
    A(f'v_mul_f32 v15, 0x{f2u(1/64):08x}, v14')
    gen_tw(A, 15, 8, T2)
    A(f's_mul_i32 s40, s30, {RS}')
    A('v_lshlrev_b32 v16, 3, v6')
    A(f'v_mul_u32_u24 v17, {KS}, v13')
    A('v_add_u32 v17, v17, v12')
    A('v_lshlrev_b32 v17, 3, v17')
    A(f'v_mul_u32_u24 v18, {PB}, v13')
    A('v_add_u32 v18, v18, v12')
    A('v_lshlrev_b32 v18, 3, v18')
    A(f'v_mul_u32_u24 v19, {PB*8}, v6')
    A('v_add_u32 v22, s40, v16')
    A('v_add_u32 v23, s40, v17')
    A('v_add_u32 v24, s40, v18')
    A('v_add_u32 v25, s40, v19')

def role_rowfwd2(A, tag):
    A.stamp(0)
    A('s_load_dwordx2 s[4:5], s[0:1], 0')
    A('s_load_dwordx2 s[28:29], s[0:1], 96')
    consts = emit_w16_consts(A, 20)
    wave_ids(A)
    A('s_lshl_b32 s16, s2, 3')
    A('s_lshl_b32 s17, s30, 1')
    A('s_add_u32 s17, s17, s16')
    A('s_lshl_b32 s17, s17, 11')
    A('s_add_u32 s18, s17, 2048')
    A('v_lshlrev_b32 v7, 2, v6')
    A('s_waitcnt lgkmcnt(0)')
    srd(A, 8, 4, 4194304)
    srd(A, 32, 28, WS_BYTES)
    RAW = 72
    for ri, sr in enumerate((17, 18)):
        for n1 in range(8):
            A(f'buffer_load_dword v{RAW+8*ri+n1}, v7, s[8:11], s{sr} offen offset:{256*n1}')
    T1 = {k: 40 + 2*k for k in range(8)}
    T2 = {k: 56 + 2*k for k in range(8)}
    row_setup1(A, T1, T2)
    A('v_lshrrev_b32 v30, 2, v6')
    A(f'v_mul_u32_u24 v30, {TS2}, v30')
    A('v_and_b32 v31, 3, v6')
    A('v_lshl_add_u32 v30, v31, 2, v30')
    A('s_lshl_b32 s42, s30, 5')
    A('v_add_u32 v30, s42, v30')
    A('v_and_b32 v1, 7, v0')
    A('v_lshrrev_b32 v2, 3, v0')
    A(f'v_mul_u32_u24 v4, {TS2}, v2')
    A('v_lshl_add_u32 v4, v1, 4, v4')
    A(f'v_mul_u32_u24 v3, {CPS}, v2')
    A('v_lshl_add_u32 v3, v1, 4, v3')
    A.stamp(1)
    DA = 88
    for ri in range(2):
        pool = Pool(88, 12)
        cx = Cx(A, pool)
        A(f's_waitcnt vmcnt({8*(1-ri)})')
        x = []
        for n1 in range(8):
            r = pool.get()
            A(f'v_lshlrev_b32 v{r}, 16, v{RAW+8*ri+n1}')
            A(f'v_and_b32 v{r+1}, 0xffff0000, v{RAW+8*ri+n1}')
            x.append(V(r))
        y = cx.dft(x, -1, consts)
        for k1 in range(8):
            v = y[k1]
            if k1: v = cx.cmul(v.r, v, P(T1[k1]))
            v = cx.resolve(v)
            A(f'ds_write_b64 v22, {P(v.r)} offset:{k1*KS*8}')
            pool.put(v.r)
        x = []
        for n2 in range(8):
            r = pool.get()
            A(f'ds_read_b64 {P(r)}, v23 offset:{n2*64}')
            x.append(V(r))
        A('s_waitcnt lgkmcnt(0)')
        y = cx.dft(x, -1, consts)
        for k2 in range(8):
            v = y[k2]
            if k2: v = cx.cmul(v.r, v, P(T2[k2]))
            v = cx.resolve(v)
            A(f'ds_write_b64 v24, {P(v.r)} offset:{k2*8*PB*8}')
            pool.put(v.r)
        pool.free = [r for r in pool.free if not (DA <= r < DA+16)]
        for q in range(4):
            A(f'ds_read_b128 v[{DA+4*q}:{DA+4*q+3}], v25 offset:{16*q}')
        A('s_waitcnt lgkmcnt(0)')
        a = cx.dft([V(DA+2*n) for n in range(8)], -1, consts)
        for k3 in range(8):
            v = cx.resolve(a[k3])
            A(f'v_cvt_pk_bf16_f32 v{RAW+8*ri+k3}, v{v.r}, v{v.r+1}')
    A.stamp(2)
    A('s_barrier')
    for ri in range(2):
        for k3 in range(8):
            A(f'ds_write_b32 v30, v{RAW+8*ri+k3} offset:{16*ri + k3*16*TS2}')
    A('s_waitcnt lgkmcnt(0)')
    A('s_barrier')
    A.stamp(3)
    ST = 40
    for i in range(4):
        A(f'ds_read_b128 v[{ST+4*i}:{ST+4*i+3}], v4 offset:{32*TS2*i}')
    A('s_lshl_b32 s31, s2, 7')
    A(f's_add_u32 s31, s31, {ZR_OFF}')
    for i in range(4):
        A(f's_waitcnt lgkmcnt({3-i})')
        A(f'buffer_store_dwordx4 v[{ST+4*i}:{ST+4*i+3}], v3, s[32:35], s31 offen')
        if i < 3: A(f's_add_u32 s31, s31, {32*CPS}')
    A.stamp(4)
    A.stamp_flush(5, 32, 0)
    A('s_endpgm')
    return 112
```

```python
import sys
from asmlib import *
from roles_c import *
from roles_e import *
from roles_f import *
from roles_g import *
from build import finish

def kernel(A, name, roles, stamp_base):
    A.raw(f'.globl {name}\n.p2align 8\n.type {name},@function')
    A.label(name)
    tot = 0
    A('s_mov_b32 s94, s2')
    for i, (fn, cnt) in enumerate(roles):
        A(f's_cmp_lt_u32 s2, {cnt}')
        A(f's_cbranch_scc1 L_{name}_r{i}')
        A(f's_sub_u32 s2, s2, {cnt}')
    A('s_endpgm')
    nv = 0
    for i, (fn, cnt) in enumerate(roles):
        A.raw('.p2align 6')
        A.label(f'L_{name}_r{i}')
        A(f's_mov_b32 s57, {stamp_base + i*0x80000}')
        nv = max(nv, fn(A, f'{name}_r{i}'))
        tot += cnt
    return tot, nv

if __name__ == '__main__':
    A = Asm()
    A.stamps = len(sys.argv) > 2
    g1, v1 = kernel(A, 'k1_kernel', [(role_kgen3, 512), (role_rowfwd2, 256), (role_wtr, 288), (role_utr, 256)], 0x4000000)
    g2, v2 = kernel(A, 'k2_kernel', [(role_col2, 256), (role_conv4, 512)], 0x4400000)
    g3, v3 = kernel(A, 'k3_kernel', [(role_rowinv, 256), (role_ytr, 256)], 0x4800000)
    finish(A, [('k1_kernel', g1, 256, LDS_KGEN3, v1), ('k2_kernel', g2, 256, LDS_CONV2, v2), ('k3_kernel', g3, 256, LDS_ROW, v3)], sys.argv[1])
```

```python
from asmlib import *
from kA import srd, gen_tw
from roles_c import *

OPT = {}
def role_col2(A, tag):
    A.stamp(0)
    if OPT.get('colprio'): A(f"s_setprio {OPT['colprio']}")
    A('s_load_dwordx2 s[28:29], s[0:1], 96')
    xmap4(A)
    consts = emit_w16_consts(A, 20)
    A('v_lshrrev_b32 v1, 7, v0')
    A('v_and_b32 v2, 127, v0')
    A('s_nop 0')
    A('v_readfirstlane_b32 s30, v1')
    A('s_sub_u32 s16, 512, s2')
    A('s_cmp_eq_u32 s2, 0')
    A('s_cselect_b32 s46, 1, 0')
    A('s_cselect_b32 s17, 256, s16')
    A('s_cmp_eq_u32 s30, 0')
    A('s_cselect_b32 s18, s2, s17')
    A('s_lshr_b32 s19, s18, 2')
    A(f's_mul_i32 s19, s19, {CPS}')
    A('s_and_b32 s31, s18, 3')
    A('s_lshl_b32 s31, s31, 2')
    A('s_add_u32 s19, s19, s31')
    A(f's_add_u32 s19, s19, {ZR_OFF}')
    A('v_lshlrev_b32 v3, 4, v2')
    A('s_waitcnt lgkmcnt(0)')
    srd(A, 12, 28, WS_BYTES)
    pool = Pool(80, 30)
    cx = Cx(A, pool)
    x = []
    for n1 in range(16):
        r = pool.get()
        A(f'buffer_load_dword v{r+1}, v3, s[12:15], s19 offen offset:{(n1%2)*2048}')
        if n1 % 2 == 1 and n1 < 15: A('s_add_u32 s19, s19, 4096')
        x.append(V(r))
    WR1 = 140; WR2 = 148; WX = 20
    A('v_lshlrev_b32 v14, 2, v0')
    A('v_sub_u32 v15, 1024, v14')
    A('v_sub_u32 v16, 8192, v14')
    A('v_and_b32 v16, 8191, v16')
    def wloads(dst1, dst2, c1, c2):
        if dst1 is not None:
            for k3 in range(8):
                A(f'buffer_load_dword v{dst1+k3}, v14, s[12:15], s{c1 if k3 < 4 else c1+1} offen offset:{1024*(k3%4)}')
        if dst2 is not None:
            A(f'buffer_load_dword v{dst2}, v16, s[12:15], s{c2} offen')
            for k3 in range(1, 8):
                kk = 7 - k3
                A(f'buffer_load_dword v{dst2+k3}, v15, s[12:15], s{c2 if kk < 4 else c2+1} offen offset:{1024*(kk%4)}')
    A('s_lshl_b32 s36, s2, 13')
    A(f's_add_u32 s36, s36, {WT_OFF}')
    A('s_add_u32 s37, s36, 4096')
    A('s_lshl_b32 s38, s16, 13')
    A(f's_add_u32 s38, s38, {WT_OFF}')
    A('s_add_u32 s39, s38, 4096')
    if not OPT.get('wlate'):
        wloads(WR1, WR2, 36, 38)
        A('s_cmp_eq_u32 s46, 0')
        A(f's_cbranch_scc1 L_{tag}_nox')
        wloads(WX+8, WX, 38, 36)
        A.label(f'L_{tag}_nox')
    TW = {k: 40 + 2*k for k in range(16)}
    A('v_cvt_f32_u32 v4, v2')
    A(f'v_mul_f32 v4, 0x{f2u(1/2048):08x}, v4')
    gen_tw(A, 4, 16, TW)
    A(f'v_mul_u32_u24 v9, {CS1}, v1')
    A('v_add_u32 v5, v9, v2')
    A('v_lshlrev_b32 v5, 3, v5')
    A('v_lshrrev_b32 v6, 3, v2')
    A('v_and_b32 v7, 7, v2')
    A(f'v_mul_u32_u24 v8, {K1S}, v6')
    A('v_add3_u32 v8, v8, v9, v7')
    A('v_lshlrev_b32 v8, 3, v8')
    A(f'v_mul_u32_u24 v9, {CS2}, v1')
    A(f'v_mul_u32_u24 v10, {P2P}, v6')
    A('v_add3_u32 v10, v10, v9, v7')
    A('v_lshlrev_b32 v10, 3, v10')
    A(f'v_mul_u32_u24 v11, {P2P*8}, v0')
    A('v_sub_u32 v13, 256, v0')
    A('v_and_b32 v13, 255, v13')
    A(f'v_mul_u32_u24 v13, {P2P*8}, v13')
    A(f's_mov_b32 s47, {CS2*8}')
    A('s_cmp_eq_u32 s46, 1')
    A('s_cselect_b32 s47, 0, s47')
    A('v_add_u32 v13, s47, v13')
    A('v_cvt_f32_u32 v12, v7')
    T8 = 72
    A(f'v_mul_f32 v17, 0x{f2u(1/8):08x}, v12')
    A('v_add_u32 v18, -128, v0')
    A('s_lshl_b32 s47, s46, 3')
    A('s_sub_u32 s47, 8, s47')
    A('v_cmp_gt_u32 vcc, s47, v18')
    A('s_nop 1')
    A('v_cndmask_b32 v17, 0, v17, vcc')
    A(f'v_cos_f32 v{T8}, v17')
    A(f'v_sin_f32_e64 v{T8+1}, -v17')
    A(f'v_mul_f32 v12, 0x{f2u(1/128):08x}, v12')
    A('v_cvt_f32_u32 v17, s2')
    A(f'v_mul_f32 v17, 0x{f2u(1/1024):08x}, v17')
    A('v_cos_f32 v18, v17')
    A('v_sin_f32_e64 v19, -v17')
    A('s_nop 0')
    A('v_readfirstlane_b32 s44, v18')
    A('v_readfirstlane_b32 s45, v19')
    A.stamp(1)
    A('s_waitcnt vmcnt(0)' if OPT.get('wlate') else 's_waitcnt vmcnt(16)')
    A.stamp(2)
    for v in x:
        A(f'v_lshlrev_b32 v{v.r}, 16, v{v.r+1}')
        A(f'v_and_b32 v{v.r+1}, 0xffff0000, v{v.r+1}')
    y = cx.dft(x, -1, consts)
    for k1 in range(16):
        v = y[k1]
        if k1: v = cx.cmul(v.r, v, P(TW[k1]))
        v = cx.resolve(v)
        A(f'ds_write_b64 v5, {P(v.r)} offset:{k1*K1S*8}')
        pool.put(v.r)
    if OPT.get('wlate'):
        wloads(WR1, WR2, 36, 38)
        A('s_cmp_eq_u32 s46, 0')
        A(f's_cbranch_scc1 L_{tag}_nox2')
        wloads(WX+8, WX, 38, 36)
        A.label(f'L_{tag}_nox2')
    gen_tw(A, 12, 16, TW)
    A('s_waitcnt lgkmcnt(0)')
    A('s_barrier')
    x = []
    for n2 in range(16):
        r = pool.get()
        A(f'ds_read_b64 {P(r)}, v8 offset:{n2*64}')
        x.append(V(r))
    A('s_waitcnt lgkmcnt(0)')
    A('s_barrier')
    y = cx.dft(x, -1, consts)
    for k2 in range(16):
        v = y[k2]
        if k2: v = cx.cmul(v.r, v, P(TW[k2]))
        else: v = cx.cmul(v.r, v, P(T8))
        v = cx.resolve(v)
        A(f'ds_write_b64 v10, {P(v.r)} offset:{k2*16*P2P*8}')
        pool.put(v.r)
    A('s_waitcnt lgkmcnt(0)')
    A('s_barrier')
    sc = 1.0/(2*2048*1024)
    A(f's_mov_b32 s42, 0x{f2u(sc):08x}')
    A(f's_mov_b32 s43, 0x{f2u(sc):08x}')
    A('s_mov_b32 s48, s46')
    DA = 100; DB = 116
    pool.free = [r for r in pool.free if not (100 <= r < 132)]
    free0 = list(pool.free)
    A.label(f'L_{tag}_st3')
    for (ad, base) in ((11, DA), (13, DB)):
        for q in range(4):
            A(f'ds_read_b128 v[{base+4*q}:{base+4*q+3}], v{ad} offset:{16*q}')
    A('s_waitcnt lgkmcnt(4)')
    a = cx.dft([V(DA+2*n) for n in range(8)], -1, consts)
    A('s_waitcnt lgkmcnt(0)')
    b = cx.dft([V(DB+2*n) for n in range(8)], -1, consts)
    a = [cx.resolve(v) for v in a]; b = [cx.resolve(v) for v in b]
    A('s_barrier')
    A.stamp(3)
    A('s_cmp_eq_u32 s46, 0')
    A(f's_cbranch_scc1 L_{tag}_norot')
    A('v_cmp_eq_u32 vcc, 0, v0')
    A('s_and_saveexec_b64 s[50:51], vcc')
    A(f'v_mov_b32 v74, v{b[0].r}'); A(f'v_mov_b32 v75, v{b[0].r+1}')
    for i in range(7):
        A(f'v_mov_b32 v{b[i].r}, v{b[i+1].r}'); A(f'v_mov_b32 v{b[i].r+1}, v{b[i+1].r+1}')
    A(f'v_mov_b32 v{b[7].r}, v74'); A(f'v_mov_b32 v{b[7].r+1}, v75')
    A('s_mov_b64 exec, s[50:51]')
    A.label(f'L_{tag}_norot')
    A('s_waitcnt vmcnt(0)')
    z1 = [None]*8; z2 = [None]*8
    W1 = 74; W2 = 76; WT = 78
    for k3 in range(8):
        Av = a[k3]; Bv = b[7-k3]
        A(f'v_lshlrev_b32 v{W1}, 16, v{WR1+k3}')
        A(f'v_and_b32 v{W1+1}, 0xffff0000, v{WR1+k3}')
        A(f'v_lshlrev_b32 v{W2}, 16, v{WR2+k3}')
        A(f'v_and_b32 v{W2+1}, 0xffff0000, v{WR2+k3}')
        A('s_cmp_eq_u32 s48, 0')
        A(f's_cbranch_scc1 L_{tag}_s{k3}')
        A(f'v_lshlrev_b32 v{WT}, 16, v{WX+k3}')
        A(f'v_and_b32 v{WT+1}, 0xffff0000, v{WX+k3}')
        A(f'v_pk_add_f32 {P(W1)}, {P(W1)}, {P(WT)} neg_hi:[0,1]')
        A(f'v_pk_mul_f32 {P(W1)}, {P(W1)}, 0.5 op_sel_hi:[1,0]')
        A(f'v_lshlrev_b32 v{WT}, 16, v{WX+8+k3}')
        A(f'v_and_b32 v{WT+1}, 0xffff0000, v{WX+8+k3}')
        A(f'v_pk_add_f32 {P(W2)}, {P(W2)}, {P(WT)} neg_hi:[0,1]')
        A(f'v_pk_mul_f32 {P(W2)}, {P(W2)}, 0.5 op_sel_hi:[1,0]')
        A.label(f'L_{tag}_s{k3}')
        A(f'v_pk_mul_f32 {P(W1)}, {P(W1)}, s[42:43]')
        A(f'v_pk_mul_f32 {P(W2)}, {P(W2)}, s[42:43]')
        E = pool.get(); O = pool.get()
        A(f'v_pk_add_f32 {P(E)}, {P(Av.r)}, {P(Bv.r)} neg_hi:[0,1]')
        A(f'v_pk_add_f32 {P(O)}, {P(Av.r)}, {P(Bv.r)} neg_lo:[0,1]')
        T = cx.cmul(O, V(O), 's[44:45]')
        Pv = cx.addq(Av.r, V(E), T, 3)
        Qv = cx.addq(Bv.r, V(E), T, 1)
        Y1 = cx.cmul(Pv.r, Pv, P(W1))
        Y2 = cx.cmul(Qv.r, Qv, P(W2), conj=True)
        S1 = cx.addq(E, Y1, Y2, 0)
        D1 = cx.addq(O, Y1, Y2, 2)
        U = cx.cmul(O, D1, 's[44:45]', conj=True)
        z1[k3] = cx.addq(Av.r, S1, U, 1)
        A(f'v_pk_add_f32 {P(Bv.r)}, {P(E)}, {P(O)} op_sel:[0,1] op_sel_hi:[1,0] neg_hi:[1,0]')
        z2[7-k3] = V(Bv.r)
        pool.put(E); pool.put(O)
    A.stamp(4)
    A('s_cmp_eq_u32 s48, 0')
    A(f's_cbranch_scc1 L_{tag}_nopf')
    A(f's_mov_b32 s36, {WT_OFF + 256*8192}')
    A(f's_mov_b32 s37, {WT_OFF + 256*8192 + 4096}')
    wloads(WR1, WR2, 36, 36)
    A.label(f'L_{tag}_nopf')
    y = cx.dft(z1, +1, consts)
    for n3 in range(8):
        v = cx.resolve(y[n3])
        A(f'ds_write_b64 v11, {P(v.r)} offset:{n3*8}')
        pool.put(v.r)
    A('s_cmp_eq_u32 s46, 1')
    A(f's_cbranch_scc1 L_{tag}_mnext')
    y = cx.dft(z2, +1, consts)
    for n3 in range(8):
        v = cx.resolve(y[n3])
        A(f'ds_write_b64 v13, {P(v.r)} offset:{n3*8}')
        pool.put(v.r)
    A(f's_branch L_{tag}_st3done')
    A.label(f'L_{tag}_mnext')
    A('s_cmp_eq_u32 s48, 0')
    A(f's_cbranch_scc1 L_{tag}_st3done')
    A('s_mov_b32 s48, 0')
    A(f'v_add_u32 v11, {CS2*8}, v11')
    A(f'v_add_u32 v13, {CS2*8}, v13')
    A('s_mov_b32 s44, 0')
    A('s_mov_b32 s45, -1.0')
    A(f's_branch L_{tag}_st3')
    A.label(f'L_{tag}_st3done')
    pool.free = sorted(set(range(80, 140, 2)))
    A('s_waitcnt lgkmcnt(0)')
    A('s_barrier')
    x = []
    for k2 in range(16):
        r = pool.get()
        A(f'ds_read_b64 {P(r)}, v10 offset:{k2*16*P2P*8}')
        x.append(V(r))
    A('s_waitcnt lgkmcnt(0)')
    A('s_barrier')
    for k2 in range(16):
        x[k2] = cx.cmul(x[k2].r, x[k2], P(TW[k2]) if k2 else P(T8), conj=True)
    y = cx.dft(x, +1, consts)
    for n2 in range(16):
        v = cx.resolve(y[n2])
        A(f'ds_write_b64 v8, {P(v.r)} offset:{n2*64}')
        pool.put(v.r)
    gen_tw(A, 4, 16, TW)
    A('s_waitcnt lgkmcnt(0)')
    A('s_barrier')
    x = []
    for k1 in range(16):
        r = pool.get()
        A(f'ds_read_b64 {P(r)}, v5 offset:{k1*K1S*8}')
        x.append(V(r))
    A('v_lshlrev_b32 v3, 2, v2')
    A('s_lshl_b32 s19, s18, 13')
    A(f's_add_u32 s19, s19, {ZP_OFF}')
    A('s_waitcnt lgkmcnt(0)')
    for k1 in range(1, 16):
        x[k1] = cx.cmul(x[k1].r, x[k1], P(TW[k1]), conj=True)
    y = cx.dft(x, +1, consts)
    A.stamp(5)
    for n1 in range(16):
        v = cx.resolve(y[n1])
        A(f'v_cvt_pk_bf16_f32 v{v.r}, v{v.r}, v{v.r+1}')
        A(f'buffer_store_dword v{v.r}, v3, s[12:15], s19 offen offset:{(n1%8)*512}')
        if n1 == 7: A('s_add_u32 s19, s19, 4096')
    A.stamp(6)
    A.stamp_flush(7, 12, 0)
    A('s_endpgm')
    return 156
```

```python
import sys
from asmlib import *
from roles_c import *
from roles_e import *
from roles_f import *
from roles_g import *
from build import finish

def kernel(A, name, roles, stamp_base):
    A.raw(f'.globl {name}\n.p2align 8\n.type {name},@function')
    A.label(name)
    tot = 0
    A('s_mov_b32 s94, s2')
    for i, (fn, cnt) in enumerate(roles):
        A(f's_cmp_lt_u32 s2, {cnt}')
        A(f's_cbranch_scc1 L_{name}_r{i}')
        A(f's_sub_u32 s2, s2, {cnt}')
    A('s_endpgm')
    nv = 0
    for i, (fn, cnt) in enumerate(roles):
        A.raw('.p2align 6')
        A.label(f'L_{name}_r{i}')
        A(f's_mov_b32 s57, {stamp_base + i*0x80000}')
        nv = max(nv, fn(A, f'{name}_r{i}'))
        tot += cnt
    return tot, nv

if __name__ == '__main__':
    import roles_f, re
    opts = dict(kv.split('=') for kv in sys.argv[2:] if '=' in kv)
    roles_f.OPT.update({k:int(v) for k,v in opts.items() if v.isdigit()})
    K1R = dict(k=(role_kgen3, 512), r=(role_rowfwd2, 256), w=(role_wtr, 288), u=(role_utr, 256))
    A = Asm()
    A.stamps = 'st' in sys.argv[2:]
    g1, v1 = kernel(A, 'k1_kernel', [K1R[c] for c in opts.get('k1','krwu')], 0x4000000)
    g2, v2 = kernel(A, 'k2_kernel', [(role_col2, 256), (role_conv4, 512)], 0x4400000)
    g3, v3 = kernel(A, 'k3_kernel', [(role_rowinv, 256), (role_ytr, 256)], 0x4800000)
    finish(A, [('k1_kernel', g1, 256, LDS_KGEN3, v1), ('k2_kernel', g2, 256, LDS_CONV2, v2), ('k3_kernel', g3, 256, LDS_ROW, v3)], sys.argv[1])
    t = open(sys.argv[1]).read()
    t = re.sub(r'(buffer_store_dword\w*\s+[^\n]*offen[^\n]*)', lambda m: m.group(1)+' sc1', t)
    open(sys.argv[1],'w').write(t)
```

```python
import math, struct

def f2u(x):
    return struct.unpack('<I', struct.pack('<f', x))[0]

class Asm:
    def __init__(self):
        self.lines = []
    def __call__(self, s):
        self.lines.append('    ' + s)
    def label(self, s):
        self.lines.append(s + ':')
    def raw(self, s):
        self.lines.append(s)
    def comment(self, s):
        self.lines.append('    ; ' + s)
    def stamp(self, k):
        if getattr(self, 'stamps', False):
            self.lines.append(f'    s_memtime s[{60+2*k}:{61+2*k}]')
            if k == 0: self.lines.append('    s_memrealtime s[90:91]')
    def stamp_flush(self, n, srd, off):
        if not getattr(self, 'stamps', False): return
        A = self
        A('s_waitcnt lgkmcnt(0) vmcnt(0)')
        A('v_lshrrev_b32 v1, 6, v0')
        A('s_lshl_b32 s58, s2, 4')
        A('v_add_u32 v1, s58, v1')
        A('v_lshlrev_b32 v1, 6, v1')
        A('s_memrealtime s[92:93]')
        A('s_waitcnt lgkmcnt(0)')
        A('v_mov_b32 v2, s90')
        A(f'buffer_store_dword v2, v1, s[{srd}:{srd+3}], s57 offen offset:56')
        A('v_mov_b32 v2, s92')
        A(f'buffer_store_dword v2, v1, s[{srd}:{srd+3}], s57 offen offset:60')
        for k in range(n):
            A(f's_sub_u32 s59, s{60+2*k}, s60')
            A('v_mov_b32 v2, s59')
            A(f'buffer_store_dword v2, v1, s[{srd}:{srd+3}], s57 offen offset:{4*k}')
    def text(self):
        return '\n'.join(self.lines) + '\n'

class Pool:
    def __init__(self, start, n):
        assert start % 2 == 0
        self.free = [start + 2*i for i in range(n)]
        self.hi = start
    def get(self):
        r = self.free.pop(0)
        self.hi = max(self.hi, r+2)
        return r
    def put(self, r):
        assert r not in self.free
        self.free.append(r)

def P(r):
    return f'v[{r}:{r+1}]'

PADD_MODS = {0: '', 1: ' op_sel:[0,1] op_sel_hi:[1,0] neg_lo:[0,1]',
             2: ' neg_lo:[0,1] neg_hi:[0,1]', 3: ' op_sel:[0,1] op_sel_hi:[1,0] neg_hi:[0,1]'}

class V:
    __slots__ = ('r', 'rot')
    def __init__(self, r, rot=0):
        self.r = r; self.rot = rot % 4

class Cx:
    def __init__(self, A, pool):
        self.A = A; self.pool = pool
    def addq(self, d, a, b, q):
        qq = (b.rot + q - a.rot) % 4
        self.A(f'v_pk_add_f32 {P(d)}, {P(a.r)}, {P(b.r)}{PADD_MODS[qq]}')
        return V(d, a.rot)
    def cmul(self, d, x, w, conj=False):
        t = self.pool.get()
        self.A(f'v_pk_mul_f32 {P(t)}, {P(x.r)}, {w} op_sel:[0,0] op_sel_hi:[1,0]')
        neg = 'neg_hi:[0,1,0]' if conj else 'neg_lo:[0,1,0]'
        self.A(f'v_pk_fma_f32 {P(d)}, {P(x.r)}, {w}, {P(t)} op_sel:[1,1,0] op_sel_hi:[0,1,1] {neg}')
        self.pool.put(t)
        return V(d, x.rot)
    def resolve(self, x):
        if x.rot == 0: return x
        m = {1: 'op_sel:[1,0] op_sel_hi:[0,0] neg_lo:[1,0]', 2: 'neg_lo:[1,0] neg_hi:[1,0] op_sel_hi:[1,0]', 3: 'op_sel:[1,0] op_sel_hi:[0,0] neg_hi:[1,0]'}[x.rot]
        t = self.pool.get()
        self.A(f'v_pk_mul_f32 {P(t)}, {P(x.r)}, 1.0 {m}')
        self.pool.put(x.r)
        return V(t, 0)
    def bfly2(self, a, b):
        t = self.pool.get()
        y1 = self.addq(t, a, b, 2)
        y0 = self.addq(a.r, a, b, 0)
        self.pool.put(b.r)
        return [y0, y1]
    def bfly4(self, x, sign):
        a, b, c, d = x
        t = self.pool.get()
        t1 = self.addq(t, a, c, 2)
        t0 = self.addq(a.r, a, c, 0)
        t3 = self.addq(c.r, b, d, 2)
        t2 = self.addq(b.r, b, d, 0)
        y2 = self.addq(d.r, t0, t2, 2)
        y0 = self.addq(t0.r, t0, t2, 0)
        q = 3 if sign < 0 else 1
        y1 = self.addq(t2.r, t1, t3, q)
        y3 = self.addq(t1.r, t1, t3, (q+2) % 4)
        self.pool.put(t3.r)
        return [y0, y1, y2, y3]
    def dft(self, x, sign, consts):
        R = len(x)
        if R == 2: return self.bfly2(*x)
        if R == 4: return self.bfly4(x, sign)
        R1, R2 = {8: (2, 4), 16: (4, 4)}[R]
        mid = [[None]*R2 for _ in range(R1)]
        for n2 in range(R2):
            y = self.dft([x[n1*R2+n2] for n1 in range(R1)], sign, consts)
            for k1 in range(R1):
                e = (n2*k1*(16//R)) % 16
                v = y[k1]
                quad, rem = e // 4, e % 4
                if rem:
                    v = self.cmul(v.r, v, consts[rem], conj=(sign > 0))
                v = V(v.r, v.rot + (3*quad if sign < 0 else quad))
                mid[k1][n2] = v
        out = [None]*R
        for k1 in range(R1):
            y = self.dft(mid[k1], sign, consts)
            for k2 in range(R2):
                out[k1 + R1*k2] = y[k2]
        return out

def emit_w16_consts(A, sbase):
    c = {}
    for k in (1, 2, 3):
        A(f's_mov_b32 s{sbase+2*(k-1)}, 0x{f2u(math.cos(2*math.pi*k/16)):08x}')
        A(f's_mov_b32 s{sbase+2*(k-1)+1}, 0x{f2u(-math.sin(2*math.pi*k/16)):08x}')
        c[k] = f's[{sbase+2*(k-1)}:{sbase+2*(k-1)+1}]'
    return c

G128 = [list(range(0,4))+list(range(12,16))+list(range(20,28)), list(range(4,12))+list(range(16,20))+list(range(28,32))]
G128 = G128 + [[l+32 for l in g] for g in G128]
def conflicts(kind, addrs):
    if kind == 'r64': groups = [range(0,32), range(32,64)]; nb = 64; nd = 2
    elif kind == 'r128': groups = G128; nb = 64; nd = 4
    elif kind == 'r32': groups = [range(0,32), range(32,64)]; nb = 32; nd = 1
    elif kind == 'w64': groups = [range(16*i,16*i+16) for i in range(4)]; nb = 32; nd = 2
    elif kind == 'w128': groups = [range(8*i,8*i+8) for i in range(8)]; nb = 32; nd = 4
    elif kind == 'w32': groups = [range(0,32), range(32,64)]; nb = 32; nd = 1
    tot = 0
    for g in groups:
        banks = {}
        for l in g:
            for d in range(nd):
                dw = addrs[l]//4 + d
                banks.setdefault(dw % nb, set()).add(dw)
        tot += max(len(s) for s in banks.values())
    return tot, len(groups)

def _parts(w):
    import re
    m = re.match(r'([vs])\[(\d+):(\d+)\]', w)
    return f'{m.group(1)}{m.group(2)}', f'{m.group(1)}{m.group(3)}'

class CxS(Cx):
    def addq(self, d, a, b, q):
        qq = (b.rot + q - a.rot) % 4
        A = self.A
        ar, ai, br, bi = a.r, a.r+1, b.r, b.r+1
        if qq % 2 == 1 and d == b.r:
            raise Exception('alias')
        if qq == 0:
            A(f'v_add_f32 v{d}, v{ar}, v{br}'); A(f'v_add_f32 v{d+1}, v{ai}, v{bi}')
        elif qq == 1:
            A(f'v_sub_f32 v{d}, v{ar}, v{bi}'); A(f'v_add_f32 v{d+1}, v{ai}, v{br}')
        elif qq == 2:
            A(f'v_sub_f32 v{d}, v{ar}, v{br}'); A(f'v_sub_f32 v{d+1}, v{ai}, v{bi}')
        else:
            A(f'v_add_f32 v{d}, v{ar}, v{bi}'); A(f'v_sub_f32 v{d+1}, v{ai}, v{br}')
        return V(d, a.rot)
    def cmul(self, d, x, w, conj=False):
        A = self.A
        wr, wi = _parts(w)
        t = self.pool.get()
        A(f'v_mul_f32 v{t}, {wr}, v{x.r}')
        A(f'v_mul_f32 v{t+1}, {wi}, v{x.r}')
        if not conj:
            A(f'v_fma_f32 v{d}, -v{x.r+1}, {wi}, v{t}')
            A(f'v_fma_f32 v{d+1}, v{x.r+1}, {wr}, v{t+1}')
        else:
            A(f'v_fma_f32 v{d}, v{x.r+1}, {wi}, v{t}')
            A(f'v_fma_f32 v{d+1}, v{x.r+1}, {wr}, -v{t+1}')
        self.pool.put(t)
        return V(d, x.rot)
    def resolve(self, x):
        if x.rot == 0: return x
        A = self.A
        t = self.pool.get()
        if x.rot == 1:
            A(f'v_sub_f32 v{t}, 0, v{x.r+1}'); A(f'v_mov_b32 v{t+1}, v{x.r}')
        elif x.rot == 2:
            A(f'v_sub_f32 v{t}, 0, v{x.r}'); A(f'v_sub_f32 v{t+1}, 0, v{x.r+1}')
        else:
            A(f'v_mov_b32 v{t}, v{x.r+1}'); A(f'v_sub_f32 v{t+1}, 0, v{x.r}')
        self.pool.put(x.r)
        return V(t, 0)
```

```python
from asmlib import *
from kA import srd, gen_tw
from roles_c import *

OPT = {}
def role_col2(A, tag):
    A.stamp(0)
    if OPT.get('colprio'): A(f"s_setprio {OPT['colprio']}")
    A('s_load_dwordx2 s[28:29], s[0:1], 96')
    xmap4(A)
    consts = emit_w16_consts(A, 20)
    A('v_lshrrev_b32 v1, 7, v0')
    A('v_and_b32 v2, 127, v0')
    A('s_nop 0')
    A('v_readfirstlane_b32 s30, v1')
    A('s_sub_u32 s16, 512, s2')
    A('s_cmp_eq_u32 s2, 0')
    A('s_cselect_b32 s46, 1, 0')
    A('s_cselect_b32 s17, 256, s16')
    A('s_cmp_eq_u32 s30, 0')
    A('s_cselect_b32 s18, s2, s17')
    A('s_lshr_b32 s19, s18, 2')
    A(f's_mul_i32 s19, s19, {CPS}')
    A('s_and_b32 s31, s18, 3')
    A('s_lshl_b32 s31, s31, 2')
    A('s_add_u32 s19, s19, s31')
    A(f's_add_u32 s19, s19, {ZR_OFF}')
    A('v_lshlrev_b32 v3, 4, v2')
    A('s_waitcnt lgkmcnt(0)')
    srd(A, 12, 28, WS_BYTES)
    pool = Pool(80, 30)
    cx = CxS(A, pool) if OPT.get('scalar') else Cx(A, pool)
    x = []
    for n1 in range(16):
        r = pool.get()
        A(f'buffer_load_dword v{r+1}, v3, s[12:15], s19 offen offset:{(n1%2)*2048}')
        if n1 % 2 == 1 and n1 < 15: A('s_add_u32 s19, s19, 4096')
        x.append(V(r))
    WR1 = 140; WR2 = 148; WX = 20
    A('v_lshlrev_b32 v14, 2, v0')
    A('v_sub_u32 v15, 1024, v14')
    A('v_sub_u32 v16, 8192, v14')
    A('v_and_b32 v16, 8191, v16')
    def wloads(dst1, dst2, c1, c2):
        if dst1 is not None:
            for k3 in range(8):
                A(f'buffer_load_dword v{dst1+k3}, v14, s[12:15], s{c1 if k3 < 4 else c1+1} offen offset:{1024*(k3%4)}')
        if dst2 is not None:
            A(f'buffer_load_dword v{dst2}, v16, s[12:15], s{c2} offen')
            for k3 in range(1, 8):
                kk = 7 - k3
                A(f'buffer_load_dword v{dst2+k3}, v15, s[12:15], s{c2 if kk < 4 else c2+1} offen offset:{1024*(kk%4)}')
    A('s_lshl_b32 s36, s2, 13')
    A(f's_add_u32 s36, s36, {WT_OFF}')
    A('s_add_u32 s37, s36, 4096')
    A('s_lshl_b32 s38, s16, 13')
    A(f's_add_u32 s38, s38, {WT_OFF}')
    A('s_add_u32 s39, s38, 4096')
    if not OPT.get('wlate'):
        wloads(WR1, WR2, 36, 38)
        A('s_cmp_eq_u32 s46, 0')
        A(f's_cbranch_scc1 L_{tag}_nox')
        wloads(WX+8, WX, 38, 36)
        A.label(f'L_{tag}_nox')
    TW = {k: 40 + 2*k for k in range(16)}
    A('v_cvt_f32_u32 v4, v2')
    A(f'v_mul_f32 v4, 0x{f2u(1/2048):08x}, v4')
    gen_tw(A, 4, 16, TW)
    A(f'v_mul_u32_u24 v9, {CS1}, v1')
    A('v_add_u32 v5, v9, v2')
    A('v_lshlrev_b32 v5, 3, v5')
    A('v_lshrrev_b32 v6, 3, v2')
    A('v_and_b32 v7, 7, v2')
    A(f'v_mul_u32_u24 v8, {K1S}, v6')
    A('v_add3_u32 v8, v8, v9, v7')
    A('v_lshlrev_b32 v8, 3, v8')
    A(f'v_mul_u32_u24 v9, {CS2}, v1')
    A(f'v_mul_u32_u24 v10, {P2P}, v6')
    A('v_add3_u32 v10, v10, v9, v7')
    A('v_lshlrev_b32 v10, 3, v10')
    A(f'v_mul_u32_u24 v11, {P2P*8}, v0')
    A('v_sub_u32 v13, 256, v0')
    A('v_and_b32 v13, 255, v13')
    A(f'v_mul_u32_u24 v13, {P2P*8}, v13')
    A(f's_mov_b32 s47, {CS2*8}')
    A('s_cmp_eq_u32 s46, 1')
    A('s_cselect_b32 s47, 0, s47')
    A('v_add_u32 v13, s47, v13')
    A('v_cvt_f32_u32 v12, v7')
    T8 = 72
    A(f'v_mul_f32 v17, 0x{f2u(1/8):08x}, v12')
    A('v_add_u32 v18, -128, v0')
    A('s_lshl_b32 s47, s46, 3')
    A('s_sub_u32 s47, 8, s47')
    A('v_cmp_gt_u32 vcc, s47, v18')
    A('s_nop 1')
    A('v_cndmask_b32 v17, 0, v17, vcc')
    A(f'v_cos_f32 v{T8}, v17')
    A(f'v_sin_f32_e64 v{T8+1}, -v17')
    A(f'v_mul_f32 v12, 0x{f2u(1/128):08x}, v12')
    A('v_cvt_f32_u32 v17, s2')
    A(f'v_mul_f32 v17, 0x{f2u(1/1024):08x}, v17')
    A('v_cos_f32 v18, v17')
    A('v_sin_f32_e64 v19, -v17')
    A('s_nop 0')
    A('v_readfirstlane_b32 s44, v18')
    A('v_readfirstlane_b32 s45, v19')
    A.stamp(1)
    A('s_waitcnt vmcnt(0)' if OPT.get('wlate') else 's_waitcnt vmcnt(16)')
    A.stamp(2)
    for v in x:
        A(f'v_lshlrev_b32 v{v.r}, 16, v{v.r+1}')
        A(f'v_and_b32 v{v.r+1}, 0xffff0000, v{v.r+1}')
    y = cx.dft(x, -1, consts)
    for k1 in range(16):
        v = y[k1]
        if k1: v = cx.cmul(v.r, v, P(TW[k1]))
        v = cx.resolve(v)
        A(f'ds_write_b64 v5, {P(v.r)} offset:{k1*K1S*8}')
        pool.put(v.r)
    if OPT.get('wlate'):
        wloads(WR1, WR2, 36, 38)
        A('s_cmp_eq_u32 s46, 0')
        A(f's_cbranch_scc1 L_{tag}_nox2')
        wloads(WX+8, WX, 38, 36)
        A.label(f'L_{tag}_nox2')
    gen_tw(A, 12, 16, TW)
    A('s_waitcnt lgkmcnt(0)')
    A('s_barrier')
    x = []
    for n2 in range(16):
        r = pool.get()
        A(f'ds_read_b64 {P(r)}, v8 offset:{n2*64}')
        x.append(V(r))
    A('s_waitcnt lgkmcnt(0)')
    A('s_barrier')
    y = cx.dft(x, -1, consts)
    for k2 in range(16):
        v = y[k2]
        if k2: v = cx.cmul(v.r, v, P(TW[k2]))
        else: v = cx.cmul(v.r, v, P(T8))
        v = cx.resolve(v)
        A(f'ds_write_b64 v10, {P(v.r)} offset:{k2*16*P2P*8}')
        pool.put(v.r)
    A('s_waitcnt lgkmcnt(0)')
    A('s_barrier')
    sc = 1.0/(2*2048*1024)
    A(f's_mov_b32 s42, 0x{f2u(sc):08x}')
    A(f's_mov_b32 s43, 0x{f2u(sc):08x}')
    A('s_mov_b32 s48, s46')
    DA = 100; DB = 116
    pool.free = [r for r in pool.free if not (100 <= r < 132)]
    free0 = list(pool.free)
    A.label(f'L_{tag}_st3')
    for (ad, base) in ((11, DA), (13, DB)):
        for q in range(4):
            A(f'ds_read_b128 v[{base+4*q}:{base+4*q+3}], v{ad} offset:{16*q}')
    A('s_waitcnt lgkmcnt(4)')
    a = cx.dft([V(DA+2*n) for n in range(8)], -1, consts)
    A('s_waitcnt lgkmcnt(0)')
    b = cx.dft([V(DB+2*n) for n in range(8)], -1, consts)
    a = [cx.resolve(v) for v in a]; b = [cx.resolve(v) for v in b]
    A('s_barrier')
    A.stamp(3)
    A('s_cmp_eq_u32 s46, 0')
    A(f's_cbranch_scc1 L_{tag}_norot')
    A('v_cmp_eq_u32 vcc, 0, v0')
    A('s_and_saveexec_b64 s[50:51], vcc')
    A(f'v_mov_b32 v74, v{b[0].r}'); A(f'v_mov_b32 v75, v{b[0].r+1}')
    for i in range(7):
        A(f'v_mov_b32 v{b[i].r}, v{b[i+1].r}'); A(f'v_mov_b32 v{b[i].r+1}, v{b[i+1].r+1}')
    A(f'v_mov_b32 v{b[7].r}, v74'); A(f'v_mov_b32 v{b[7].r+1}, v75')
    A('s_mov_b64 exec, s[50:51]')
    A.label(f'L_{tag}_norot')
    A('s_waitcnt vmcnt(0)')
    z1 = [None]*8; z2 = [None]*8
    W1 = 74; W2 = 76; WT = 78
    for k3 in range(8):
        Av = a[k3]; Bv = b[7-k3]
        A(f'v_lshlrev_b32 v{W1}, 16, v{WR1+k3}')
        A(f'v_and_b32 v{W1+1}, 0xffff0000, v{WR1+k3}')
        A(f'v_lshlrev_b32 v{W2}, 16, v{WR2+k3}')
        A(f'v_and_b32 v{W2+1}, 0xffff0000, v{WR2+k3}')
        A('s_cmp_eq_u32 s48, 0')
        A(f's_cbranch_scc1 L_{tag}_s{k3}')
        A(f'v_lshlrev_b32 v{WT}, 16, v{WX+k3}')
        A(f'v_and_b32 v{WT+1}, 0xffff0000, v{WX+k3}')
        A(f'v_pk_add_f32 {P(W1)}, {P(W1)}, {P(WT)} neg_hi:[0,1]')
        A(f'v_pk_mul_f32 {P(W1)}, {P(W1)}, 0.5 op_sel_hi:[1,0]')
        A(f'v_lshlrev_b32 v{WT}, 16, v{WX+8+k3}')
        A(f'v_and_b32 v{WT+1}, 0xffff0000, v{WX+8+k3}')
        A(f'v_pk_add_f32 {P(W2)}, {P(W2)}, {P(WT)} neg_hi:[0,1]')
        A(f'v_pk_mul_f32 {P(W2)}, {P(W2)}, 0.5 op_sel_hi:[1,0]')
        A.label(f'L_{tag}_s{k3}')
        E = pool.get(); O = pool.get()
        if OPT.get('scalar'):
            for r in (W1, W1+1, W2, W2+1): A(f'v_mul_f32 v{r}, s42, v{r}')
            A(f'v_add_f32 v{E}, v{Av.r}, v{Bv.r}'); A(f'v_sub_f32 v{E+1}, v{Av.r+1}, v{Bv.r+1}')
            A(f'v_sub_f32 v{O}, v{Av.r}, v{Bv.r}'); A(f'v_add_f32 v{O+1}, v{Av.r+1}, v{Bv.r+1}')
        else:
            A(f'v_pk_mul_f32 {P(W1)}, {P(W1)}, s[42:43]')
            A(f'v_pk_mul_f32 {P(W2)}, {P(W2)}, s[42:43]')
            A(f'v_pk_add_f32 {P(E)}, {P(Av.r)}, {P(Bv.r)} neg_hi:[0,1]')
            A(f'v_pk_add_f32 {P(O)}, {P(Av.r)}, {P(Bv.r)} neg_lo:[0,1]')
        T = cx.cmul(O, V(O), 's[44:45]')
        Pv = cx.addq(Av.r, V(E), T, 3)
        Qv = cx.addq(Bv.r, V(E), T, 1)
        Y1 = cx.cmul(Pv.r, Pv, P(W1))
        Y2 = cx.cmul(Qv.r, Qv, P(W2), conj=True)
        S1 = cx.addq(E, Y1, Y2, 0)
        D1 = cx.addq(O, Y1, Y2, 2)
        U = cx.cmul(O, D1, 's[44:45]', conj=True)
        z1[k3] = cx.addq(Av.r, S1, U, 1)
        if OPT.get('scalar'):
            A(f'v_add_f32 v{Bv.r}, v{E}, v{O+1}'); A(f'v_sub_f32 v{Bv.r+1}, v{O}, v{E+1}')
        else:
            A(f'v_pk_add_f32 {P(Bv.r)}, {P(E)}, {P(O)} op_sel:[0,1] op_sel_hi:[1,0] neg_hi:[1,0]')
        z2[7-k3] = V(Bv.r)
        pool.put(E); pool.put(O)
    A.stamp(4)
    A('s_cmp_eq_u32 s48, 0')
    A(f's_cbranch_scc1 L_{tag}_nopf')
    A(f's_mov_b32 s36, {WT_OFF + 256*8192}')
    A(f's_mov_b32 s37, {WT_OFF + 256*8192 + 4096}')
    wloads(WR1, WR2, 36, 36)
    A.label(f'L_{tag}_nopf')
    y = cx.dft(z1, +1, consts)
    for n3 in range(8):
        v = cx.resolve(y[n3])
        A(f'ds_write_b64 v11, {P(v.r)} offset:{n3*8}')
        pool.put(v.r)
    A('s_cmp_eq_u32 s46, 1')
    A(f's_cbranch_scc1 L_{tag}_mnext')
    y = cx.dft(z2, +1, consts)
    for n3 in range(8):
        v = cx.resolve(y[n3])
        A(f'ds_write_b64 v13, {P(v.r)} offset:{n3*8}')
        pool.put(v.r)
    A(f's_branch L_{tag}_st3done')
    A.label(f'L_{tag}_mnext')
    A('s_cmp_eq_u32 s48, 0')
    A(f's_cbranch_scc1 L_{tag}_st3done')
    A('s_mov_b32 s48, 0')
    A(f'v_add_u32 v11, {CS2*8}, v11')
    A(f'v_add_u32 v13, {CS2*8}, v13')
    A('s_mov_b32 s44, 0')
    A('s_mov_b32 s45, -1.0')
    A(f's_branch L_{tag}_st3')
    A.label(f'L_{tag}_st3done')
    pool.free = sorted(set(range(80, 140, 2)))
    A('s_waitcnt lgkmcnt(0)')
    A('s_barrier')
    x = []
    for k2 in range(16):
        r = pool.get()
        A(f'ds_read_b64 {P(r)}, v10 offset:{k2*16*P2P*8}')
        x.append(V(r))
    A('s_waitcnt lgkmcnt(0)')
    A('s_barrier')
    for k2 in range(16):
        x[k2] = cx.cmul(x[k2].r, x[k2], P(TW[k2]) if k2 else P(T8), conj=True)
    y = cx.dft(x, +1, consts)
    for n2 in range(16):
        v = cx.resolve(y[n2])
        A(f'ds_write_b64 v8, {P(v.r)} offset:{n2*64}')
        pool.put(v.r)
    gen_tw(A, 4, 16, TW)
    A('s_waitcnt lgkmcnt(0)')
    A('s_barrier')
    x = []
    for k1 in range(16):
        r = pool.get()
        A(f'ds_read_b64 {P(r)}, v5 offset:{k1*K1S*8}')
        x.append(V(r))
    A('v_lshlrev_b32 v3, 2, v2')
    A('s_lshl_b32 s19, s18, 13')
    A(f's_add_u32 s19, s19, {ZP_OFF}')
    A('s_waitcnt lgkmcnt(0)')
    for k1 in range(1, 16):
        x[k1] = cx.cmul(x[k1].r, x[k1], P(TW[k1]), conj=True)
    y = cx.dft(x, +1, consts)
    A.stamp(5)
    for n1 in range(16):
        v = cx.resolve(y[n1])
        A(f'v_cvt_pk_bf16_f32 v{v.r}, v{v.r}, v{v.r+1}')
        A(f'buffer_store_dword v{v.r}, v3, s[12:15], s19 offen offset:{(n1%8)*512}')
        if n1 == 7: A('s_add_u32 s19, s19, 4096')
    A.stamp(6)
    A.stamp_flush(7, 12, 0)
    A('s_endpgm')
    return 156
```

```python
from asmlib import *
from kA import srd
from roles_c import *
from roles_b import LOG2E
from roles_e import KG_P, KG_X, KG_T
import math
def role_kgen4(A, tag):
    A.stamp(0)
    A('s_load_dwordx8 s[64:71], s[0:1], 32')
    A('s_load_dwordx2 s[72:73], s[0:1], 64')
    A('s_load_dwordx2 s[80:81], s[0:1], 96')
    A('v_lshrrev_b32 v1, 6, v0')
    A('s_nop 0')
    A('v_readfirstlane_b32 s30, v1')
    A('v_and_b32 v2, 63, v0')
    A('s_lshr_b32 s28, s30, 1')
    A('s_and_b32 s29, s30, 1')
    A('s_lshl_b32 s31, s2, 1')
    A('s_add_u32 s31, s31, s28')
    A('s_waitcnt lgkmcnt(0)')
    srd(A, 8, 64, 262144)
    srd(A, 12, 66, 262144)
    srd(A, 20, 68, 262144)
    srd(A, 24, 70, 262144)
    srd(A, 32, 72, 2048)
    srd(A, 44, 80, WS_BYTES)
    A('v_lshlrev_b32 v3, 1, v2')
    A('s_lshl_b32 s48, s31, 8')
    A('s_lshl_b32 s49, s29, 7')
    A('s_add_u32 s48, s48, s49')
    A('s_lshl_b32 s49, s31, 1')
    A('v_mov_b32 v4, 0')
    A('buffer_load_short_d16_hi v24, v3, s[8:11], s48 offen')
    A('buffer_load_short_d16_hi v25, v3, s[12:15], s48 offen')
    A('buffer_load_short_d16_hi v26, v3, s[20:23], s48 offen')
    A('buffer_load_short_d16_hi v27, v3, s[24:27], s48 offen')
    A('buffer_load_short_d16_hi v14, v4, s[32:35], s49 offen')
    A('s_lshl_b32 s51, s30, 10')
    A('v_lshlrev_b32 v7, 4, v2')
    A('v_add_u32 v7, s51, v7')
    A('v_and_b32 v16, 15, v2')
    A('v_lshrrev_b32 v17, 4, v2')
    A('v_cvt_f32_u32 v18, v16')
    A(f'v_mul_f32 v19, 0x{f2u(16.0):08x}, v18')
    A('v_cmp_eq_u32 s[54:55], 0, v16')
    A(f'v_mov_b32 v20, 0x{f2u(256.0):08x}')
    A('s_nop 0')
    A('v_cndmask_b32 v19, v19, v20, s[54:55]')
    A('v_lshlrev_b32 v21, 6, v17')
    A('v_add_u32 v21, s51, v21')
    ACC = [32 + 4*h for h in range(4)]
    for r in range(32, 48): A(f'v_mov_b32 v{r}, 0')
    A('s_waitcnt vmcnt(0)')
    A(f'v_mul_f32 v14, 0x{f2u(LOG2E):08x}, v14')
    A('v_exp_f32 v14, v14')
    A(f'v_mul_f32 v24, 0x{f2u(LOG2E):08x}, v24')
    A('v_exp_f32 v24, v24')
    A('v_cvt_pk_bf16_f32 v14, v14, v14')
    A('v_lshlrev_b32 v14, 16, v14')
    A('v_cvt_pk_bf16_f32 v24, v24, v24')
    A('v_lshlrev_b32 v24, 16, v24')
    A('v_mul_f32 v25, v25, v14')
    A('v_mul_f32 v24, v24, v14')
    A(f'v_mul_f32 v24, 0x{f2u(-LOG2E):08x}, v24')
    A(f'v_mul_f32 v25, 0x{f2u(1/(2*math.pi)):08x}, v25')
    A('v_add_f32 v14, v14, v14')
    A('v_mul_f32 v26, v26, v14')
    A('v_mul_f32 v27, v27, v14')
    A('v_max_f32 v28, abs(v26), abs(v27)' if False else 'v_max_f32_e64 v28, |v26|, |v27|')
    for off in (0x041F, 0x081F, 0x101F, 0x201F, 0x401F):
        A(f'ds_swizzle_b32 v29, v28 offset:{off}')
        A('s_waitcnt lgkmcnt(0)')
        A('v_max_f32 v28, v28, v29')
    A('s_nop 0')
    A('v_readlane_b32 s40, v28, 0')
    A('v_readlane_b32 s41, v28, 32')
    A('s_nop 1')
    A('v_mov_b32 v28, s40')
    A('v_max_f32 v28, s41, v28')
    A('v_frexp_exp_i32_f32 v29, v28')
    A('v_sub_u32 v30, 0, v29')
    A('v_ldexp_f32 v26, v26, v30')
    A('v_ldexp_f32 v27, v27, v30')
    A('v_cvt_pk_f16_f32 v26, v26, v27')
    A('ds_write_b128 v7, v[24:27]')
    A.stamp(1)
    GF = [48 + 4*h for h in range(4)]
    EF = [64 + 4*h for h in range(4)]
    PR = 80
    pool = Pool(96, 0); pool.free = [10, 12, 22]
    cx = Cx(A, pool)
    A('s_mov_b32 s56, 0')
    A.label(f'L_{tag}_kg')
    for q in range(4):
        A(f'ds_read_b128 v[{PR+4*q}:{PR+4*q+3}], v21 offset:{16*q}')
    A('v_add_u32 v21, 256, v21')
    for q in range(4):
        A(f's_waitcnt lgkmcnt({3-q})')
        p = PR + 4*q
        E = pool.get(); F = pool.get(); t = pool.get()
        for (Z, fl, sg) in ((E, 18, '-'), (F, 19, '')):
            A(f'v_mul_f32 v{t}, v{p}, v{fl}')
            A(f'v_mul_f32 v{t+1}, v{p+1}, v{fl}')
            A(f'v_exp_f32 v{t}, v{t}')
            A(f'v_fract_f32 v{t+1}, v{t+1}')
            A(f'v_cos_f32 v{Z}, v{t+1}')
            A(f'v_sin_f32_e64 v{Z+1}, {sg}v{t+1}')
            A(f'v_mul_f32 v{Z}, v{Z}, v{t}')
            A(f'v_mul_f32 v{Z+1}, v{Z+1}, v{t}')
        A(f'v_cvt_pk_f16_f32 v{EF[0]+q}, v{E}, v{E+1}')
        A(f'v_cvt_pk_f16_f32 v{F}, v{F}, v{F+1}')
        def hmul(d, x, w):
            A(f'v_pk_mul_f16 v{t}, v{x}, v{w} op_sel:[0,0] op_sel_hi:[1,0]')
            A(f'v_pk_fma_f16 v{d}, v{x}, v{w}, v{t} op_sel:[1,1,0] op_sel_hi:[0,1,1] neg_lo:[0,1,0]')
        hmul(t+1, F, p+2)
        A(f'v_cndmask_b32 v{GF[0]+q}, v{t+1}, v{p+2}, s[54:55]')
        hmul(GF[1]+q, t+1, F)
        hmul(F, F, F)
        hmul(EF[1]+q, EF[0]+q, EF[0]+q)
        hmul(GF[2]+q, GF[1]+q, F)
        hmul(F, F, F)
        hmul(EF[2]+q, EF[1]+q, EF[1]+q)
        hmul(GF[3]+q, GF[2]+q, F)
        hmul(EF[3]+q, EF[2]+q, EF[2]+q)
        pool.put(E); pool.put(F); pool.put(t)
    A('s_nop 1')
    for h in range(4):
        A(f'v_mfma_f32_16x16x32_f16 v[{ACC[h]}:{ACC[h]+3}], v[{GF[h]}:{GF[h]+3}], v[{EF[h]}:{EF[h]+3}], v[{ACC[h]}:{ACC[h]+3}]')
    A('s_add_u32 s56, s56, 1')
    A('s_cmp_lt_u32 s56, 4')
    A(f's_cbranch_scc1 L_{tag}_kg')
    A.stamp(2)
    A('s_lshl_b32 s52, s30, 12')
    A(f's_add_u32 s52, s52, {KG_X}')
    A('s_xor_b32 s53, s30, 1')
    A('s_lshl_b32 s53, s53, 12')
    A(f's_add_u32 s53, s53, {KG_X}')
    A('v_lshlrev_b32 v5, 4, v2')
    A('v_add_u32 v6, s52, v5')
    A('v_add_u32 v8, s53, v5')
    A(f's_mul_i32 s58, s30, 1344')
    A(f's_add_u32 s58, s58, {KG_T}')
    A('v_lshlrev_b32 v22, 7, v17')
    A('v_lshl_add_u32 v22, v16, 1, v22')
    A('v_add_u32 v22, s58, v22')
    A('s_nop 3')
    for r in range(32, 48): A(f'v_ldexp_f32 v{r}, v{r}, v29')
    for h in range(4):
        A(f'ds_write_b128 v6, v[{ACC[h]}:{ACC[h]+3}] offset:{1024*h}')
    A('s_waitcnt lgkmcnt(0)')
    A('s_barrier')
    for h in range(4):
        A(f'ds_read_b128 v[{48+4*h}:{51+4*h}], v8 offset:{1024*h}')
    for h in range(4):
        A(f's_waitcnt lgkmcnt({3-h})')
        for r in range(4):
            A(f'v_add_f32 v{ACC[h]+r}, v{ACC[h]+r}, v{48+4*h+r}')
            A(f'v_cvt_pk_bf16_f32 v{ACC[h]+r}, v{ACC[h]+r}, v{ACC[h]+r}')
    for r in range(4):
        A(f'ds_write_b16 v22, v{ACC[0]+r} offset:{32*r}')
    A('s_mov_b32 exec_lo, 0')
    for h in range(1, 4):
        for r in range(4):
            A(f'ds_write_b16 v22, v{ACC[h]+r} offset:{32*r + 256*h}')
    A('s_mov_b64 exec, 1')
    A(f'ds_write_b16 v22, v{ACC[3]} offset:1280')
    A('s_mov_b64 exec, -1')
    A(f's_sub_u32 s59, s58, {2*(0x4380-256)}')
    A('v_lshlrev_b32 v24, 2, v2')
    A('s_lshl_b32 s24, s29, 8')
    A('v_add_u32 v24, s24, v24')
    A('v_cvt_f32_u32 v23, v24')
    G0 = 48; G1 = 64
    for i in range(5):
        if i == 0:
            for e in range(4):
                r = (G0 if e % 2 == 0 else G1) + 2*i + e//2
                A(f'v_add_u32 v25, {-32+e}, v24')
                A('v_max_i32 v25, 0, v25')
                A('v_cvt_f32_u32 v27, v25')
                A('v_cvt_pk_bf16_f32 v27, v27, v27')
                A('v_and_b32 v27, 0xffff, v27')
                A(f'v_subrev_u32 v27, {0x4380-256}, v27')
                A('v_cmp_gt_u32 vcc, 128, v25')
                A('s_nop 1')
                A('v_cndmask_b32 v25, v27, v25, vcc')
                A('v_lshl_add_u32 v25, v25, 1, s58')
                op = 'ds_read_u16_d16' if e % 2 == 0 else 'ds_read_u16_d16_hi'
                A(f'{op} v{r}, v25')
        else:
            for e2 in range(2):
                A(f'v_add_f32 v25, 0x{f2u(float(512*i-32+2*e2)):08x}, v23')
                A(f'v_add_f32 v26, 0x{f2u(float(512*i-32+2*e2+1)):08x}, v23')
                if i == 4:
                    A(f'v_min_f32 v25, 0x{f2u(2047.0):08x}, v25')
                    A(f'v_min_f32 v26, 0x{f2u(2047.0):08x}, v26')
                A('v_cvt_pk_bf16_f32 v25, v25, v26')
                A('v_lshrrev_b32 v26, 16, v25')
                A('v_and_b32 v25, 0xffff, v25')
                A('v_lshl_add_u32 v25, v25, 1, s59')
                A('v_lshl_add_u32 v26, v26, 1, s59')
                A(f'ds_read_u16_d16 v{G0+2*i+e2}, v25')
                A(f'ds_read_u16_d16_hi v{G1+2*i+e2}, v26')
    A('s_waitcnt lgkmcnt(0)')
    for r in range(10): A(f'v_or_b32 v{G0+r}, v{G0+r}, v{G1+r}')
    A('v_cmp_gt_u32 vcc, 32, v24')
    A('s_nop 1')
    A(f'v_cndmask_b32_e64 v{G0}, v{G0}, 0, vcc')
    A(f'v_cndmask_b32_e64 v{G0+1}, v{G0+1}, 0, vcc')
    A('v_lshlrev_b32 v26, 3, v2')
    A('s_mul_i32 s49, s31, 4224')
    A(f's_add_u32 s49, s49, {KT_OFF}')
    A('s_lshl_b32 s25, s29, 9')
    A('s_add_u32 s49, s49, s25')
    for i in range(4):
        A(f'buffer_store_dwordx2 v[{G0+2*i}:{G0+2*i+1}], v26, s[44:47], s49 offen offset:{1024*i}')
    A('s_cmp_eq_u32 s29, 1')
    A(f's_cbranch_scc1 L_{tag}_done')
    A('s_add_u32 s49, s49, 4096')
    A('s_mov_b64 exec, 0xff')
    A(f'buffer_store_dwordx2 v[{G0+8}:{G0+9}], v26, s[44:47], s49 offen')
    A('s_mov_b64 exec, -1')
    A.label(f'L_{tag}_done')
    A.stamp(3)
    A.stamp_flush(4, 44, 0)
    A('s_endpgm')
    return 96
```

```python
import sys
from asmlib import *
from roles_c import *
from roles_e import *
from roles_f import *
from roles_g import *
from roles_j import *
from roles_k import *
from roles_l import *
from build import finish

def kernel(A, name, roles, stamp_base):
    A.raw(f'.globl {name}\n.p2align 8\n.type {name},@function')
    A.label(name)
    tot = 0
    A('s_mov_b32 s94, s2')
    for i, (fn, cnt) in enumerate(roles):
        A(f's_cmp_lt_u32 s2, {cnt}')
        A(f's_cbranch_scc1 L_{name}_r{i}')
        A(f's_sub_u32 s2, s2, {cnt}')
    A('s_endpgm')
    nv = 0
    for i, (fn, cnt) in enumerate(roles):
        A.raw('.p2align 6')
        A.label(f'L_{name}_r{i}')
        A(f's_mov_b32 s57, {stamp_base + i*0x80000}')
        nv = max(nv, fn(A, f'{name}_r{i}'))
        tot += cnt
    return tot, nv

def kernel2(A, name, ncol, stamp_base):
    A.raw(f'.globl {name}\n.p2align 8\n.type {name},@function')
    A.label(name)
    lim = [ncol, ncol, 256-2*ncol]
    A('s_cmp_ge_u32 s2, 768')
    A(f's_cbranch_scc1 L_{name}_x')
    A('s_lshr_b32 s4, s2, 8')
    A('s_and_b32 s5, s2, 255')
    A(f's_mov_b32 s6, {lim[0]}')
    A('s_cmp_eq_u32 s4, 2')
    A(f's_cselect_b32 s6, {lim[2]}, s6')
    A(f's_mul_i32 s7, s4, {ncol}')
    A('s_cmp_lt_u32 s5, s6')
    A(f's_cbranch_scc0 L_{name}_conv')
    A('s_add_u32 s2, s7, s5')
    A(f's_branch L_{name}_r0')
    A.label(f'L_{name}_conv')
    A('s_lshl_b32 s8, s4, 8')
    A('s_sub_u32 s8, s8, s7')
    A('s_sub_u32 s5, s5, s6')
    A('s_add_u32 s2, s8, s5')
    A(f's_branch L_{name}_r1')
    A.label(f'L_{name}_x')
    A('s_endpgm')
    nv = 0
    for i, fn in enumerate((role_col2, role_conv4)):
        A.raw('.p2align 6')
        A.label(f'L_{name}_r{i}')
        A(f's_mov_b32 s57, {stamp_base + i*0x80000}')
        nv = max(nv, fn(A, f'{name}_r{i}'))
    return 768, nv

if __name__ == '__main__':
    import roles_f, re
    opts = dict(kv.split('=') for kv in sys.argv[2:] if '=' in kv)
    roles_f.OPT.update({k:int(v) for k,v in opts.items() if v.isdigit()})
    K1R = dict(k=(role_kgen5 if 'kc' in opts else role_kgen4 if 'f16' in opts else role_kgen3, 512), r=(role_rowfwd2, 256), w=(role_wtr, 288), u=(role_utr, 256))
    A = Asm()
    A.stamps = 'st' in sys.argv[2:]
    g1, v1 = kernel(A, 'k1_kernel', [K1R[c] for c in opts.get('k1','krwu')], 0x4000000)
    if 'ncol' in opts: g2, v2 = kernel2(A, 'k2_kernel', int(opts['ncol']), 0x4400000)
    else: g2, v2 = kernel(A, 'k2_kernel', ([(role_col2, 256), (role_kc2 if 'fuse' in opts else (role_conv7 if 'pre' in opts else role_conv6) if 'kc' in opts else role_conv4, 512)] if opts.get('k2','cv')=='cv' else [(role_conv7, 512), (role_col2, 256)]), 0x4400000)
    g3, v3 = kernel(A, 'k3_kernel', [(role_rowinv, 256), (role_ytr, 256)], 0x4800000)
    finish(A, [('k1_kernel', g1, 256, LDS_KGEN3, v1), ('k2_kernel', g2, 256, LDS_CONV2, v2), ('k3_kernel', g3, 256, LDS_ROW, v3)], sys.argv[1])
    t = open(sys.argv[1]).read()
    t = re.sub(r'(buffer_store_dword\w*\s+[^\n]*offen[^\n]*)', lambda m: m.group(1)+' sc1', t)
    open(sys.argv[1],'w').write(t)
```

```python
from asmlib import *
from kA import srd, gen_tw
from roles_c import *

LDS_ROW2 = 4*RS

def row_setup1(A, T1, T2):
    A('v_cvt_f32_u32 v10, v6')
    A(f'v_mul_f32 v11, 0x{f2u(1/512):08x}, v10')
    gen_tw(A, 11, 8, T1)
    A('v_and_b32 v12, 7, v6')
    A('v_lshrrev_b32 v13, 3, v6')
    A('v_cvt_f32_u32 v14, v12')
    A(f'v_mul_f32 v15, 0x{f2u(1/64):08x}, v14')
    gen_tw(A, 15, 8, T2)
    A(f's_mul_i32 s40, s30, {RS}')
    A('v_lshlrev_b32 v16, 3, v6')
    A(f'v_mul_u32_u24 v17, {KS}, v13')
    A('v_add_u32 v17, v17, v12')
    A('v_lshlrev_b32 v17, 3, v17')
    A(f'v_mul_u32_u24 v18, {PB}, v13')
    A('v_add_u32 v18, v18, v12')
    A('v_lshlrev_b32 v18, 3, v18')
    A(f'v_mul_u32_u24 v19, {PB*8}, v6')
    A('v_add_u32 v22, s40, v16')
    A('v_add_u32 v23, s40, v17')
    A('v_add_u32 v24, s40, v18')
    A('v_add_u32 v25, s40, v19')

def role_rowfwd2(A, tag):
    A.stamp(0)
    A('s_load_dwordx2 s[4:5], s[0:1], 0')
    A('s_load_dwordx2 s[28:29], s[0:1], 96')
    consts = emit_w16_consts(A, 20)
    wave_ids(A)
    A('s_lshl_b32 s16, s2, 3')
    A('s_lshl_b32 s17, s30, 1')
    A('s_add_u32 s17, s17, s16')
    A('s_lshl_b32 s17, s17, 11')
    A('s_add_u32 s18, s17, 2048')
    A('v_lshlrev_b32 v7, 2, v6')
    A('s_waitcnt lgkmcnt(0)')
    srd(A, 8, 4, 4194304)
    srd(A, 32, 28, WS_BYTES)
    RAW = 76
    for ri, sr in enumerate((17, 18)):
        for n1 in range(8):
            A(f'buffer_load_dword v{RAW+8*ri+n1}, v7, s[8:11], s{sr} offen offset:{256*n1}')
    T1 = {k: 46 + 2*k for k in range(8)}
    T2 = {k: 60 + 2*k for k in range(8)}
    row_setup1(A, T1, T2)
    A('v_lshrrev_b32 v30, 2, v6')
    A(f'v_mul_u32_u24 v30, {TS2}, v30')
    A('v_and_b32 v31, 3, v6')
    A('v_lshl_add_u32 v30, v31, 2, v30')
    A('s_lshl_b32 s42, s30, 5')
    A('v_add_u32 v30, s42, v30')
    A('v_and_b32 v1, 7, v0')
    A('v_lshrrev_b32 v2, 3, v0')
    A(f'v_mul_u32_u24 v4, {TS2}, v2')
    A('v_lshl_add_u32 v4, v1, 4, v4')
    A(f'v_mul_u32_u24 v3, {CPS}, v2')
    A('v_lshl_add_u32 v3, v1, 4, v3')
    A.stamp(1)
    DA = 32
    for ri in range(2):
        pool = Pool(32, 8); pool.free += [92, 94]
        cx = Cx(A, pool)
        A(f's_waitcnt vmcnt({8*(1-ri)})')
        x = []
        for n1 in range(8):
            r = pool.get()
            A(f'v_lshlrev_b32 v{r}, 16, v{RAW+8*ri+n1}')
            A(f'v_and_b32 v{r+1}, 0xffff0000, v{RAW+8*ri+n1}')
            x.append(V(r))
        y = cx.dft(x, -1, consts)
        for k1 in range(8):
            v = y[k1]
            if k1: v = cx.cmul(v.r, v, P(T1[k1]))
            v = cx.resolve(v)
            A(f'ds_write_b64 v22, {P(v.r)} offset:{k1*KS*8}')
            pool.put(v.r)
        x = []
        for n2 in range(8):
            r = pool.get()
            A(f'ds_read_b64 {P(r)}, v23 offset:{n2*64}')
            x.append(V(r))
        A('s_waitcnt lgkmcnt(0)')
        y = cx.dft(x, -1, consts)
        for k2 in range(8):
            v = y[k2]
            if k2: v = cx.cmul(v.r, v, P(T2[k2]))
            v = cx.resolve(v)
            A(f'ds_write_b64 v24, {P(v.r)} offset:{k2*8*PB*8}')
            pool.put(v.r)
        pool.free = [r for r in pool.free if not (DA <= r < DA+16)]
        for q in range(4):
            A(f'ds_read_b128 v[{DA+4*q}:{DA+4*q+3}], v25 offset:{16*q}')
        A('s_waitcnt lgkmcnt(0)')
        a = cx.dft([V(DA+2*n) for n in range(8)], -1, consts)
        for k3 in range(8):
            v = cx.resolve(a[k3])
            A(f'v_cvt_pk_bf16_f32 v{RAW+8*ri+k3}, v{v.r}, v{v.r+1}')
    A.stamp(2)
    A('s_barrier')
    for ri in range(2):
        for k3 in range(8):
            A(f'ds_write_b32 v30, v{RAW+8*ri+k3} offset:{16*ri + k3*16*TS2}')
    A('s_waitcnt lgkmcnt(0)')
    A('s_barrier')
    A.stamp(3)
    ST = 32
    for i in range(4):
        A(f'ds_read_b128 v[{ST+4*i}:{ST+4*i+3}], v4 offset:{32*TS2*i}')
    A('s_lshl_b32 s31, s2, 7')
    A(f's_add_u32 s31, s31, {ZR_OFF}')
    for i in range(4):
        A(f's_waitcnt lgkmcnt({3-i})')
        A(f'buffer_store_dwordx4 v[{ST+4*i}:{ST+4*i+3}], v3, s[32:35], s31 offen')
        if i < 3: A(f's_add_u32 s31, s31, {32*CPS}')
    A.stamp(4)
    A.stamp_flush(5, 32, 0)
    A('s_endpgm')
    return 96
```

```python
from asmlib import *
from kA import srd
from roles_c import *
from roles_b import US, UCH, KCH, sigbase, LOG2E
from roles_e import KG_P, KG_X, KG_T
import math
def role_kgen5(A, tag):
    A.stamp(0)
    A('s_load_dwordx8 s[64:71], s[0:1], 32')
    A('s_load_dwordx2 s[72:73], s[0:1], 64')
    A('s_load_dwordx2 s[80:81], s[0:1], 96')
    A('v_lshrrev_b32 v1, 6, v0')
    A('s_nop 0')
    A('v_readfirstlane_b32 s30, v1')
    A('v_and_b32 v2, 63, v0')
    A('s_lshr_b32 s28, s30, 1')
    A('s_and_b32 s29, s30, 1')
    A('s_lshl_b32 s31, s2, 1')
    A('s_add_u32 s31, s31, s28')
    A('s_waitcnt lgkmcnt(0)')
    srd(A, 8, 64, 262144)
    srd(A, 12, 66, 262144)
    srd(A, 20, 68, 262144)
    srd(A, 24, 70, 262144)
    srd(A, 32, 72, 2048)
    srd(A, 44, 80, WS_BYTES)
    A('v_lshlrev_b32 v3, 1, v2')
    A('s_lshl_b32 s48, s31, 8')
    A('s_lshl_b32 s49, s29, 7')
    A('s_add_u32 s48, s48, s49')
    A('s_lshl_b32 s49, s31, 1')
    A('v_mov_b32 v4, 0')
    A('buffer_load_short_d16_hi v24, v3, s[8:11], s48 offen')
    A('buffer_load_short_d16_hi v25, v3, s[12:15], s48 offen')
    A('buffer_load_short_d16_hi v26, v3, s[20:23], s48 offen')
    A('buffer_load_short_d16_hi v27, v3, s[24:27], s48 offen')
    A('buffer_load_short_d16_hi v14, v4, s[32:35], s49 offen')
    A('s_lshl_b32 s51, s30, 10')
    A('v_lshlrev_b32 v7, 4, v2')
    A('v_add_u32 v7, s51, v7')
    A('v_and_b32 v16, 15, v2')
    A('v_lshrrev_b32 v17, 4, v2')
    A('v_cvt_f32_u32 v18, v16')
    A(f'v_mul_f32 v19, 0x{f2u(16.0):08x}, v18')
    A('v_cmp_eq_u32 s[54:55], 0, v16')
    A(f'v_mov_b32 v20, 0x{f2u(256.0):08x}')
    A('s_nop 0')
    A('v_cndmask_b32 v19, v19, v20, s[54:55]')
    A('v_lshlrev_b32 v21, 6, v17')
    A('v_add_u32 v21, s51, v21')
    ACC = [32 + 4*h for h in range(4)]
    for r in range(32, 48): A(f'v_mov_b32 v{r}, 0')
    A('s_waitcnt vmcnt(0)')
    A(f'v_mul_f32 v14, 0x{f2u(LOG2E):08x}, v14')
    A('v_exp_f32 v14, v14')
    A(f'v_mul_f32 v24, 0x{f2u(LOG2E):08x}, v24')
    A('v_exp_f32 v24, v24')
    A('v_cvt_pk_bf16_f32 v14, v14, v14')
    A('v_lshlrev_b32 v14, 16, v14')
    A('v_cvt_pk_bf16_f32 v24, v24, v24')
    A('v_lshlrev_b32 v24, 16, v24')
    A('v_mul_f32 v25, v25, v14')
    A('v_mul_f32 v24, v24, v14')
    A(f'v_mul_f32 v24, 0x{f2u(-LOG2E):08x}, v24')
    A(f'v_mul_f32 v25, 0x{f2u(1/(2*math.pi)):08x}, v25')
    A('v_add_f32 v14, v14, v14')
    A('v_mul_f32 v26, v26, v14')
    A('v_mul_f32 v27, v27, v14')
    A('v_max_f32 v28, abs(v26), abs(v27)' if False else 'v_max_f32_e64 v28, |v26|, |v27|')
    for off in (0x041F, 0x081F, 0x101F, 0x201F, 0x401F):
        A(f'ds_swizzle_b32 v29, v28 offset:{off}')
        A('s_waitcnt lgkmcnt(0)')
        A('v_max_f32 v28, v28, v29')
    A('s_nop 0')
    A('v_readlane_b32 s40, v28, 0')
    A('v_readlane_b32 s41, v28, 32')
    A('s_nop 1')
    A('v_mov_b32 v28, s40')
    A('v_max_f32 v28, s41, v28')
    A('v_frexp_exp_i32_f32 v29, v28')
    A('v_sub_u32 v30, 0, v29')
    A('v_ldexp_f32 v26, v26, v30')
    A('v_ldexp_f32 v27, v27, v30')
    A('v_cvt_pk_f16_f32 v26, v26, v27')
    A('ds_write_b128 v7, v[24:27]')
    A.stamp(1)
    GF = [48 + 4*h for h in range(4)]
    EF = [64 + 4*h for h in range(4)]
    PR = 80
    pool = Pool(96, 0); pool.free = [10, 12, 22]
    cx = Cx(A, pool)
    A('s_mov_b32 s56, 0')
    A.label(f'L_{tag}_kg')
    for q in range(4):
        A(f'ds_read_b128 v[{PR+4*q}:{PR+4*q+3}], v21 offset:{16*q}')
    A('v_add_u32 v21, 256, v21')
    for q in range(4):
        A(f's_waitcnt lgkmcnt({3-q})')
        p = PR + 4*q
        E = pool.get(); F = pool.get(); t = pool.get()
        for (Z, fl, sg) in ((E, 18, '-'), (F, 19, '')):
            A(f'v_mul_f32 v{t}, v{p}, v{fl}')
            A(f'v_mul_f32 v{t+1}, v{p+1}, v{fl}')
            A(f'v_exp_f32 v{t}, v{t}')
            A(f'v_fract_f32 v{t+1}, v{t+1}')
            A(f'v_cos_f32 v{Z}, v{t+1}')
            A(f'v_sin_f32_e64 v{Z+1}, {sg}v{t+1}')
            A(f'v_mul_f32 v{Z}, v{Z}, v{t}')
            A(f'v_mul_f32 v{Z+1}, v{Z+1}, v{t}')
        A(f'v_cvt_pk_f16_f32 v{EF[0]+q}, v{E}, v{E+1}')
        A(f'v_cvt_pk_f16_f32 v{F}, v{F}, v{F+1}')
        def hmul(d, x, w):
            A(f'v_pk_mul_f16 v{t}, v{x}, v{w} op_sel:[0,0] op_sel_hi:[1,0]')
            A(f'v_pk_fma_f16 v{d}, v{x}, v{w}, v{t} op_sel:[1,1,0] op_sel_hi:[0,1,1] neg_lo:[0,1,0]')
        hmul(t+1, F, p+2)
        A(f'v_cndmask_b32 v{GF[0]+q}, v{t+1}, v{p+2}, s[54:55]')
        hmul(GF[1]+q, t+1, F)
        hmul(F, F, F)
        hmul(EF[1]+q, EF[0]+q, EF[0]+q)
        hmul(GF[2]+q, GF[1]+q, F)
        hmul(F, F, F)
        hmul(EF[2]+q, EF[1]+q, EF[1]+q)
        hmul(GF[3]+q, GF[2]+q, F)
        hmul(EF[3]+q, EF[2]+q, EF[2]+q)
        pool.put(E); pool.put(F); pool.put(t)
    A('s_nop 1')
    for h in range(4):
        A(f'v_mfma_f32_16x16x32_f16 v[{ACC[h]}:{ACC[h]+3}], v[{GF[h]}:{GF[h]+3}], v[{EF[h]}:{EF[h]+3}], v[{ACC[h]}:{ACC[h]+3}]')
    A('s_add_u32 s56, s56, 1')
    A('s_cmp_lt_u32 s56, 4')
    A(f's_cbranch_scc1 L_{tag}_kg')
    A.stamp(2)
    A('s_lshl_b32 s52, s30, 12')
    A(f's_add_u32 s52, s52, {KG_X}')
    A('s_xor_b32 s53, s30, 1')
    A('s_lshl_b32 s53, s53, 12')
    A(f's_add_u32 s53, s53, {KG_X}')
    A('v_lshlrev_b32 v5, 4, v2')
    A('v_add_u32 v6, s52, v5')
    A('v_add_u32 v8, s53, v5')
    A(f's_mul_i32 s58, s30, 1344')
    A(f's_add_u32 s58, s58, {KG_T}')
    A('v_lshlrev_b32 v22, 7, v17')
    A('v_lshl_add_u32 v22, v16, 1, v22')
    A('v_add_u32 v22, s58, v22')
    A('s_nop 3')
    for r in range(32, 48): A(f'v_ldexp_f32 v{r}, v{r}, v29')
    for h in range(4):
        A(f'ds_write_b128 v6, v[{ACC[h]}:{ACC[h]+3}] offset:{1024*h}')
    A('s_waitcnt lgkmcnt(0)')
    A('s_barrier')
    for h in range(4):
        A(f'ds_read_b128 v[{48+4*h}:{51+4*h}], v8 offset:{1024*h}')
    for h in range(4):
        A(f's_waitcnt lgkmcnt({3-h})')
        for r in range(4):
            A(f'v_add_f32 v{ACC[h]+r}, v{ACC[h]+r}, v{48+4*h+r}')
            A(f'v_cvt_pk_bf16_f32 v{ACC[h]+r}, v{ACC[h]+r}, v{ACC[h]+r}')
    for r in range(4):
        A(f'ds_write_b16 v22, v{ACC[0]+r} offset:{32*r}')
    A('s_mov_b32 exec_lo, 0')
    for h in range(1, 4):
        for r in range(4):
            A(f'ds_write_b16 v22, v{ACC[h]+r} offset:{32*r + 256*h}')
    A('s_mov_b64 exec, 1')
    A(f'ds_write_b16 v22, v{ACC[3]} offset:1280')
    A('s_mov_b64 exec, -1')
    A('v_lshlrev_b32 v24, 4, v2')
    A('v_add_u32 v25, s58, v24')
    A(f's_mul_i32 s49, s31, 1408')
    A(f's_add_u32 s49, s49, {KT_OFF}')
    A('s_cmp_eq_u32 s29, 1')
    A(f's_cbranch_scc1 L_{tag}_p1')
    A('ds_read_b128 v[48:51], v25')
    A('s_waitcnt lgkmcnt(0)')
    A('buffer_store_dwordx4 v[48:51], v24, s[44:47], s49 offen')
    A(f's_branch L_{tag}_done')
    A.label(f'L_{tag}_p1')
    A('s_mov_b64 exec, 0x3ffff')
    A('ds_read_b128 v[48:51], v25 offset:1024')
    A('s_waitcnt lgkmcnt(0)')
    A('buffer_store_dwordx4 v[48:51], v24, s[44:47], s49 offen offset:1024')
    A('s_mov_b64 exec, -1')
    A.label(f'L_{tag}_done')
    A.stamp(3)
    A.stamp_flush(4, 44, 0)
    A('s_endpgm')
    return 96

def role_conv6(A, tag):
    A.stamp(0)
    A('s_load_dwordx2 s[76:77], s[0:1], 72')
    A('s_load_dwordx2 s[80:81], s[0:1], 96')
    A('v_lshrrev_b32 v1, 6, v0')
    A('s_nop 0')
    A('v_readfirstlane_b32 s30, v1')
    A('v_and_b32 v2, 63, v0')
    A('s_lshr_b32 s26, s30, 1')
    A('s_and_b32 s27, s30, 1')
    A('s_lshl_b32 s31, s2, 1')
    A('s_add_u32 s31, s31, s26')
    A(f's_mul_i32 s48, s26, {UCH+KCH}')
    A(f's_add_u32 s59, s48, {UCH}')
    A('s_waitcnt lgkmcnt(0)')
    srd(A, 36, 76, 2048)
    srd(A, 44, 80, WS_BYTES)
    A('v_lshlrev_b32 v3, 4, v2')
    A('s_lshl_b32 s49, s31, 12')
    A('s_lshl_b32 s24, s27, 11')
    A('s_add_u32 s49, s49, s24')
    A(f's_add_u32 s50, s49, {UT_OFF}')
    UR = 112
    for i in range(2):
        A(f'buffer_load_dwordx4 v[{UR+4*i}:{UR+4*i+3}], v3, s[44:47], s50 offen offset:{1024*i}')
    A('v_lshlrev_b32 v26, 3, v2')
    A('s_mul_i32 s51, s31, 1408')
    A(f's_add_u32 s51, s51, {KT_OFF}')
    A('s_lshl_b32 s25, s27, 9')
    A('buffer_load_dwordx4 v[120:123], v3, s[44:47], s51 offen')
    A('buffer_load_dwordx4 v[124:127], v3, s[44:47], s51 offen offset:1024')
    A('v_mov_b32 v4, 0')
    A('s_lshl_b32 s53, s31, 1')
    A('buffer_load_ushort v15, v4, s[36:39], s53 offen')
    A('v_mov_b32 v20, 0'); A('v_mov_b32 v21, 0'); A('v_mov_b32 v22, 0'); A('v_mov_b32 v23, 0')
    A('s_mul_i32 s24, s27, 1280')
    A('s_add_u32 s24, s24, s48')
    A('v_add_u32 v6, s24, v3')
    A('ds_write_b128 v6, v[20:23]')
    A('s_mov_b64 exec, 0xffff')
    A('ds_write_b128 v6, v[20:23] offset:1024')
    A('s_mov_b64 exec, -1')
    A('v_lshrrev_b32 v7, 2, v2')
    A(f'v_mul_u32_u24 v7, {US}, v7')
    A('v_and_b32 v8, 3, v2')
    A('v_lshl_add_u32 v7, v8, 4, v7')
    A(f's_mul_i32 s24, s27, {32*US}')
    A('s_add_u32 s22, s24, s48')
    A('v_add_u32 v9, s22, v7')
    A('s_add_u32 s23, s59, s25')
    A('v_add_u32 v23, s23, v26')
    A('s_add_u32 s58, s59, 14400')
    A('v_add_u32 v10, s58, v3')
    A('s_waitcnt vmcnt(1)')
    A('ds_write_b128 v10, v[120:123]')
    A('s_mov_b64 exec, 0x3ffff')
    A('ds_write_b128 v10, v[124:127] offset:1024')
    A('s_mov_b64 exec, -1')
    for i in range(2):
        A(f'ds_write_b128 v9, v[{UR+4*i}:{UR+4*i+3}] offset:{(32+16*i)*US}')
    A(f's_sub_u32 s56, s58, {2*(0x4380-256)}')
    A('v_lshlrev_b32 v24, 2, v2')
    A('s_lshl_b32 s24, s27, 8')
    A('v_add_u32 v24, s24, v24')
    A('v_cvt_f32_u32 v22, v24')
    G0 = 64; G1 = 80
    for i in range(5):
        if i == 0:
            for e in range(4):
                r = (G0 if e % 2 == 0 else G1) + 2*i + e//2
                A(f'v_add_u32 v25, {-32+e}, v24')
                A('v_max_i32 v25, 0, v25')
                A('v_cvt_f32_u32 v27, v25')
                A('v_cvt_pk_bf16_f32 v27, v27, v27')
                A('v_and_b32 v27, 0xffff, v27')
                A(f'v_subrev_u32 v27, {0x4380-256}, v27')
                A('v_cmp_gt_u32 vcc, 128, v25')
                A('s_nop 1')
                A('v_cndmask_b32 v25, v27, v25, vcc')
                A('v_lshl_add_u32 v25, v25, 1, s58')
                op = 'ds_read_u16_d16' if e % 2 == 0 else 'ds_read_u16_d16_hi'
                A(f'{op} v{r}, v25')
        else:
            for e2 in range(2):
                A(f'v_add_f32 v25, 0x{f2u(float(512*i-32+2*e2)):08x}, v22')
                A(f'v_add_f32 v26, 0x{f2u(float(512*i-32+2*e2+1)):08x}, v22')
                if i == 4:
                    A(f'v_min_f32 v25, 0x{f2u(2047.0):08x}, v25')
                    A(f'v_min_f32 v26, 0x{f2u(2047.0):08x}, v26')
                A('v_cvt_pk_bf16_f32 v25, v25, v26')
                A('v_lshrrev_b32 v26, 16, v25')
                A('v_and_b32 v25, 0xffff, v25')
                A('v_lshl_add_u32 v25, v25, 1, s56')
                A('v_lshl_add_u32 v26, v26, 1, s56')
                A(f'ds_read_u16_d16 v{G0+2*i+e2}, v25')
                A(f'ds_read_u16_d16_hi v{G1+2*i+e2}, v26')
    A('s_waitcnt lgkmcnt(0)')
    for r in range(10): A(f'v_or_b32 v{G0+r}, v{G0+r}, v{G1+r}')
    A('v_cmp_gt_u32 vcc, 32, v24')
    A('s_nop 1')
    A(f'v_cndmask_b32_e64 v{G0}, v{G0}, 0, vcc')
    A(f'v_cndmask_b32_e64 v{G0+1}, v{G0+1}, 0, vcc')
    for i in range(4):
        A(f'ds_write_b64 v23, v[{G0+2*i}:{G0+2*i+1}] offset:{1024*i}')
    A('s_cmp_eq_u32 s27, 1')
    A(f's_cbranch_scc1 L_{tag}_c0')
    A('s_mov_b64 exec, 0xff')
    A(f'ds_write_b64 v23, v[{G0+8}:{G0+9}] offset:4096')
    A('s_mov_b64 exec, -1')
    A.label(f'L_{tag}_c0')
    A('s_waitcnt lgkmcnt(0)')
    A('s_barrier')
    H0 = 80
    for i in range(5):
        A(f'ds_read_b64 v[{H0+2*i}:{H0+2*i+1}], v23 offset:{1024*i+8}')
    A('s_waitcnt lgkmcnt(0)')
    for i in range(5):
        if i == 4:
            A('s_cmp_eq_u32 s27, 1')
            A(f's_cbranch_scc1 L_{tag}_kdone')
        d0, d1, d2, d3 = G0+2*i, G0+2*i+1, H0+2*i, H0+2*i+1
        if i == 4: A('s_mov_b64 exec, 0x7f')
        A(f'v_alignbit_b32 v26, v{d1}, v{d0}, 16')
        A(f'v_alignbit_b32 v27, v{d2}, v{d1}, 16')
        A(f'v_mov_b32 v28, v27')
        A(f'v_alignbit_b32 v29, v{d3}, v{d2}, 16')
        A(f'ds_write_b64 v23, v[26:27] offset:{1024*i + sigbase(1)}')
        A(f'v_mov_b32 v30, v{d1}')
        A(f'v_mov_b32 v31, v{d2}')
        A(f'ds_write_b64 v23, v[30:31] offset:{1024*i + sigbase(2)}')
        A(f'ds_write_b64 v23, v[28:29] offset:{1024*i + sigbase(3)}')
    A('s_mov_b64 exec, -1')
    A.label(f'L_{tag}_kdone')
    A.stamp(1)
    A('v_and_b32 v16, 31, v2')
    A('v_lshrrev_b32 v17, 5, v2')
    A('v_add_u32 v18, 1, v16')
    A('v_and_b32 v18, 3, v18')
    A('v_mul_u32_u24 v19, 4160, v18')
    A('v_cmp_lt_u32 vcc, 0, v18')
    A('s_nop 1')
    A('v_cndmask_b32_e64 v20, 0, 8, vcc')
    A('v_add_u32 v19, v19, v20')
    A('v_lshlrev_b32 v20, 3, v17')
    A('v_sub_u32 v21, v16, v20')
    A('v_sub_u32 v21, v21, v18')
    A('v_add_u32 v21, 9, v21')
    A('v_lshl_add_u32 v19, v21, 1, v19')
    A('s_lshl_b32 s24, s27, 5')
    A('s_sub_u32 s22, s59, s24')
    A('v_add_u32 v19, s22, v19')
    A(f'v_mul_u32_u24 v20, {US}, v16')
    A('v_lshl_add_u32 v20, v17, 4, v20')
    A(f'v_add_u32 v20, {US}, v20')
    A('s_add_u32 s22, s48, s24')
    A('v_add_u32 v20, s22, v20')
    C0 = 32; C1 = 48
    for r in range(32, 64): A(f'v_mov_b32 v{r}, 0')
    A('s_waitcnt lgkmcnt(0)')
    A('s_barrier')
    import roles_f
    NB = roles_f.OPT.get('nb', 4); FR = 64
    def issue(m):
        b = FR + 12*(m % NB)
        A(f'ds_read_b64 v[{b}:{b+1}], v19 offset:{32*(2*m+1)}')
        A(f'ds_read_b64 v[{b+2}:{b+3}], v19 offset:{32*(2*m+1)+8}')
        n = 2
        if m < 32:
            A(f'ds_read_b128 v[{b+4}:{b+7}], v20 offset:{(-m+31)*US}'); n += 1
        A(f'ds_read_b128 v[{b+8}:{b+11}], v20 offset:{(32-m+31)*US}'); n += 1
        return n
    cnt = []
    for k in range(NB-1): cnt.append(issue(k))
    for m in range(64):
        if m + NB - 1 < 64: cnt.append(issue(m+NB-1))
        pend = sum(cnt[m+1:])
        A(f's_waitcnt lgkmcnt({min(pend,15)})')
        b = FR + 12*(m % NB)
        if m < 32:
            A(f'v_mfma_f32_32x32x16_bf16 v[{C0}:{C0+15}], v[{b}:{b+3}], v[{b+4}:{b+7}], v[{C0}:{C0+15}]')
        A(f'v_mfma_f32_32x32x16_bf16 v[{C1}:{C1+15}], v[{b}:{b+3}], v[{b+8}:{b+11}], v[{C1}:{C1+15}]')
    A.stamp(2)
    A(f'v_mul_u32_u24 v21, {US}, v16')
    A('v_lshlrev_b32 v22, 3, v17')
    A('v_add_u32 v24, v21, v22')
    A('v_sub_u32 v21, v21, v22')
    A(f'v_add_u32 v21, {32*US+8}, v21')
    A(f's_mul_i32 s24, s27, {32*US}')
    A('s_add_u32 s22, s48, s24')
    A('v_add_u32 v21, s22, v21')
    UE = 64
    for q in range(4):
        A(f'ds_read_b64 v[{UE+2*q}:{UE+2*q+1}], v21 offset:{16*q}')
    A('s_lshl_b32 s24, s27, 12')
    A('s_add_u32 s22, s59, s24')
    A('v_add_u32 v25, s22, v3')
    A('s_xor_b32 s24, s24, 4096')
    A('s_add_u32 s22, s59, s24')
    A('v_add_u32 v26, s22, v3')
    A('s_barrier')
    A('s_cmp_eq_u32 s27, 0')
    A(f's_cbranch_scc1 L_{tag}_noswap')
    for r in range(16):
        A(f'v_swap_b32 v{C0+r}, v{C1+r}')
    A.label(f'L_{tag}_noswap')
    for q in range(4):
        A(f'ds_write_b128 v25, v[{C1+4*q}:{C1+4*q+3}] offset:{1024*q}')
    A('s_waitcnt lgkmcnt(0)')
    A('s_barrier')
    for q in range(4):
        A(f'ds_read_b128 v[{C1+4*q}:{C1+4*q+3}], v26 offset:{1024*q}')
    A('s_waitcnt vmcnt(0)')
    A('v_lshlrev_b32 v15, 16, v15')
    A('s_mul_i32 s24, s27, 2560')
    A('s_add_u32 s24, s24, s59')
    A('s_add_u32 s24, s24, 8192')
    A('v_add_u32 v24, s24, v24')
    A('v_add_u32 v7, s24, v7')
    for q in range(4):
        A(f's_waitcnt lgkmcnt({3-q})')
        ur = UE + 2*q
        for e in range(4):
            pos = 3 - e
            src = ur + pos//2
            o = 26 + e
            A(f'v_add_f32 v{C0+4*q+e}, v{C0+4*q+e}, v{C1+4*q+e}')
            if pos % 2 == 0: A(f'v_lshlrev_b32 v{o}, 16, v{src}')
            else: A(f'v_and_b32 v{o}, 0xffff0000, v{src}')
            A(f'v_mul_f32 v{o}, v{o}, v15')
            A(f'v_cvt_pk_bf16_f32 v{o}, v{o}, v{C0+4*q+e}')
            A(f'v_lshlrev_b32 v25, 16, v{o}')
            A(f'v_and_b32 v{o}, 0xffff0000, v{o}')
            A(f'v_add_f32 v{o}, v{o}, v25')
        A('v_cvt_pk_bf16_f32 v30, v26, v27')
        A('v_cvt_pk_bf16_f32 v31, v28, v29')
        A(f'ds_write_b64 v24, v[30:31] offset:{16*q}')
    for i in range(2):
        A(f'ds_read_b128 v[{UR+4*i}:{UR+4*i+3}], v7 offset:{16*i*US}')
    A(f's_add_u32 s50, s49, {YT_OFF}')
    for i in range(2):
        A(f's_waitcnt lgkmcnt({1-i})')
        A(f'buffer_store_dwordx4 v[{UR+4*i}:{UR+4*i+3}], v3, s[44:47], s50 offen offset:{1024*i}')
    A.stamp(3)
    A.stamp_flush(4, 44, 0)
    A('s_endpgm')
    return 128
```

```python
from asmlib import *
from kA import srd, gen_tw
from roles_c import *

OPT = {}
def role_col2(A, tag):
    A.stamp(0)
    if OPT.get('colprio'): A(f"s_setprio {OPT['colprio']}")
    A('s_load_dwordx2 s[28:29], s[0:1], 96')
    xmap4(A)
    consts = emit_w16_consts(A, 20)
    A('v_lshrrev_b32 v1, 7, v0')
    A('v_and_b32 v2, 127, v0')
    A('s_nop 0')
    A('v_readfirstlane_b32 s30, v1')
    A('s_sub_u32 s16, 512, s2')
    A('s_cmp_eq_u32 s2, 0')
    A('s_cselect_b32 s46, 1, 0')
    A('s_cselect_b32 s17, 256, s16')
    A('s_cmp_eq_u32 s30, 0')
    A('s_cselect_b32 s18, s2, s17')
    A('s_lshr_b32 s19, s18, 2')
    A(f's_mul_i32 s19, s19, {CPS}')
    A('s_and_b32 s31, s18, 3')
    A('s_lshl_b32 s31, s31, 2')
    A('s_add_u32 s19, s19, s31')
    A(f's_add_u32 s19, s19, {ZR_OFF}')
    A('v_lshlrev_b32 v3, 4, v2')
    A('s_waitcnt lgkmcnt(0)')
    srd(A, 12, 28, WS_BYTES)
    pool = Pool(80, 30)
    cx = CxS(A, pool) if OPT.get('scalar') else Cx(A, pool)
    x = []
    for n1 in range(16):
        r = pool.get()
        A(f'buffer_load_dword v{r+1}, v3, s[12:15], s19 offen offset:{(n1%2)*2048}')
        if n1 % 2 == 1 and n1 < 15: A('s_add_u32 s19, s19, 4096')
        x.append(V(r))
    WR1 = 140; WR2 = 148; WX = 20
    A('v_lshlrev_b32 v14, 2, v0')
    A('v_sub_u32 v15, 1024, v14')
    A('v_sub_u32 v16, 8192, v14')
    A('v_and_b32 v16, 8191, v16')
    def wloads(dst1, dst2, c1, c2):
        if dst1 is not None:
            for k3 in range(8):
                A(f'buffer_load_dword v{dst1+k3}, v14, s[12:15], s{c1 if k3 < 4 else c1+1} offen offset:{1024*(k3%4)}')
        if dst2 is not None:
            A(f'buffer_load_dword v{dst2}, v16, s[12:15], s{c2} offen')
            for k3 in range(1, 8):
                kk = 7 - k3
                A(f'buffer_load_dword v{dst2+k3}, v15, s[12:15], s{c2 if kk < 4 else c2+1} offen offset:{1024*(kk%4)}')
    A('s_lshl_b32 s36, s2, 13')
    A(f's_add_u32 s36, s36, {WT_OFF}')
    A('s_add_u32 s37, s36, 4096')
    A('s_lshl_b32 s38, s16, 13')
    A(f's_add_u32 s38, s38, {WT_OFF}')
    A('s_add_u32 s39, s38, 4096')
    if not OPT.get('wlate'):
        wloads(WR1, WR2, 36, 38)
        A('s_cmp_eq_u32 s46, 0')
        A(f's_cbranch_scc1 L_{tag}_nox')
        wloads(WX+8, WX, 38, 36)
        A.label(f'L_{tag}_nox')
    TW = {k: 40 + 2*k for k in range(16)}
    A('v_cvt_f32_u32 v4, v2')
    A(f'v_mul_f32 v4, 0x{f2u(1/2048):08x}, v4')
    gen_tw(A, 4, 16, TW)
    A(f'v_mul_u32_u24 v9, {CS1}, v1')
    A('v_add_u32 v5, v9, v2')
    A('v_lshlrev_b32 v5, 3, v5')
    A('v_lshrrev_b32 v6, 3, v2')
    A('v_and_b32 v7, 7, v2')
    A(f'v_mul_u32_u24 v8, {K1S}, v6')
    A('v_add3_u32 v8, v8, v9, v7')
    A('v_lshlrev_b32 v8, 3, v8')
    A(f'v_mul_u32_u24 v9, {CS2}, v1')
    A(f'v_mul_u32_u24 v10, {P2P}, v6')
    A('v_add3_u32 v10, v10, v9, v7')
    A('v_lshlrev_b32 v10, 3, v10')
    A(f'v_mul_u32_u24 v11, {P2P*8}, v0')
    A('v_sub_u32 v13, 256, v0')
    A('v_and_b32 v13, 255, v13')
    A(f'v_mul_u32_u24 v13, {P2P*8}, v13')
    A(f's_mov_b32 s47, {CS2*8}')
    A('s_cmp_eq_u32 s46, 1')
    A('s_cselect_b32 s47, 0, s47')
    A('v_add_u32 v13, s47, v13')
    A('v_cvt_f32_u32 v12, v7')
    T8 = 72
    A(f'v_mul_f32 v17, 0x{f2u(1/8):08x}, v12')
    A('v_add_u32 v18, -128, v0')
    A('s_lshl_b32 s47, s46, 3')
    A('s_sub_u32 s47, 8, s47')
    A('v_cmp_gt_u32 vcc, s47, v18')
    A('s_nop 1')
    A('v_cndmask_b32 v17, 0, v17, vcc')
    A(f'v_cos_f32 v{T8}, v17')
    A(f'v_sin_f32_e64 v{T8+1}, -v17')
    A(f'v_mul_f32 v12, 0x{f2u(1/128):08x}, v12')
    A('v_cvt_f32_u32 v17, s2')
    A(f'v_mul_f32 v17, 0x{f2u(1/1024):08x}, v17')
    A('v_cos_f32 v18, v17')
    A('v_sin_f32_e64 v19, -v17')
    A('s_nop 0')
    A('v_readfirstlane_b32 s44, v18')
    A('v_readfirstlane_b32 s45, v19')
    A.stamp(1)
    A('s_waitcnt vmcnt(0)' if OPT.get('wlate') else 's_waitcnt vmcnt(16)')
    A.stamp(2)
    for v in x:
        A(f'v_lshlrev_b32 v{v.r}, 16, v{v.r+1}')
        A(f'v_and_b32 v{v.r+1}, 0xffff0000, v{v.r+1}')
    y = cx.dft(x, -1, consts)
    for k1 in range(16):
        v = y[k1]
        if k1: v = cx.cmul(v.r, v, P(TW[k1]))
        v = cx.resolve(v)
        A(f'ds_write_b64 v5, {P(v.r)} offset:{k1*K1S*8}')
        pool.put(v.r)
    if OPT.get('wlate'):
        wloads(WR1, WR2, 36, 38)
        A('s_cmp_eq_u32 s46, 0')
        A(f's_cbranch_scc1 L_{tag}_nox2')
        wloads(WX+8, WX, 38, 36)
        A.label(f'L_{tag}_nox2')
    gen_tw(A, 12, 16, TW)
    A('s_waitcnt lgkmcnt(0)')
    A('s_barrier')
    x = []
    for n2 in range(16):
        r = pool.get()
        A(f'ds_read_b64 {P(r)}, v8 offset:{n2*64}')
        x.append(V(r))
    A('s_waitcnt lgkmcnt(0)')
    A('s_barrier')
    y = cx.dft(x, -1, consts)
    for k2 in range(16):
        v = y[k2]
        if k2: v = cx.cmul(v.r, v, P(TW[k2]))
        else: v = cx.cmul(v.r, v, P(T8))
        v = cx.resolve(v)
        A(f'ds_write_b64 v10, {P(v.r)} offset:{k2*16*P2P*8}')
        pool.put(v.r)
    A('s_waitcnt lgkmcnt(0)')
    A('s_barrier')
    sc = 1.0/(2*2048*1024)
    A(f's_mov_b32 s42, 0x{f2u(sc):08x}')
    A(f's_mov_b32 s43, 0x{f2u(sc):08x}')
    A('s_mov_b32 s48, s46')
    DA = 100; DB = 116
    pool.free = [r for r in pool.free if not (100 <= r < 132)]
    free0 = list(pool.free)
    A.label(f'L_{tag}_st3')
    for (ad, base) in ((11, DA), (13, DB)):
        for q in range(4):
            A(f'ds_read_b128 v[{base+4*q}:{base+4*q+3}], v{ad} offset:{16*q}')
    A('s_waitcnt lgkmcnt(4)')
    a = cx.dft([V(DA+2*n) for n in range(8)], -1, consts)
    A('s_waitcnt lgkmcnt(0)')
    b = cx.dft([V(DB+2*n) for n in range(8)], -1, consts)
    a = [cx.resolve(v) for v in a]; b = [cx.resolve(v) for v in b]
    A('s_barrier')
    A.stamp(3)
    A('s_cmp_eq_u32 s46, 0')
    A(f's_cbranch_scc1 L_{tag}_norot')
    A('v_cmp_eq_u32 vcc, 0, v0')
    A('s_and_saveexec_b64 s[50:51], vcc')
    A(f'v_mov_b32 v74, v{b[0].r}'); A(f'v_mov_b32 v75, v{b[0].r+1}')
    for i in range(7):
        A(f'v_mov_b32 v{b[i].r}, v{b[i+1].r}'); A(f'v_mov_b32 v{b[i].r+1}, v{b[i+1].r+1}')
    A(f'v_mov_b32 v{b[7].r}, v74'); A(f'v_mov_b32 v{b[7].r+1}, v75')
    A('s_mov_b64 exec, s[50:51]')
    A.label(f'L_{tag}_norot')
    A('s_waitcnt vmcnt(0)')
    if OPT.get('hyb') == 1:
        cx = CxS(A, pool); OPT['scalar'] = 1
    z1 = [None]*8; z2 = [None]*8
    W1 = 74; W2 = 76; WT = 78
    for k3 in range(8):
        Av = a[k3]; Bv = b[7-k3]
        A(f'v_lshlrev_b32 v{W1}, 16, v{WR1+k3}')
        A(f'v_and_b32 v{W1+1}, 0xffff0000, v{WR1+k3}')
        A(f'v_lshlrev_b32 v{W2}, 16, v{WR2+k3}')
        A(f'v_and_b32 v{W2+1}, 0xffff0000, v{WR2+k3}')
        A('s_cmp_eq_u32 s48, 0')
        A(f's_cbranch_scc1 L_{tag}_s{k3}')
        A(f'v_lshlrev_b32 v{WT}, 16, v{WX+k3}')
        A(f'v_and_b32 v{WT+1}, 0xffff0000, v{WX+k3}')
        A(f'v_pk_add_f32 {P(W1)}, {P(W1)}, {P(WT)} neg_hi:[0,1]')
        A(f'v_pk_mul_f32 {P(W1)}, {P(W1)}, 0.5 op_sel_hi:[1,0]')
        A(f'v_lshlrev_b32 v{WT}, 16, v{WX+8+k3}')
        A(f'v_and_b32 v{WT+1}, 0xffff0000, v{WX+8+k3}')
        A(f'v_pk_add_f32 {P(W2)}, {P(W2)}, {P(WT)} neg_hi:[0,1]')
        A(f'v_pk_mul_f32 {P(W2)}, {P(W2)}, 0.5 op_sel_hi:[1,0]')
        A.label(f'L_{tag}_s{k3}')
        E = pool.get(); O = pool.get()
        if OPT.get('scalar'):
            for r in (W1, W1+1, W2, W2+1): A(f'v_mul_f32 v{r}, s42, v{r}')
            A(f'v_add_f32 v{E}, v{Av.r}, v{Bv.r}'); A(f'v_sub_f32 v{E+1}, v{Av.r+1}, v{Bv.r+1}')
            A(f'v_sub_f32 v{O}, v{Av.r}, v{Bv.r}'); A(f'v_add_f32 v{O+1}, v{Av.r+1}, v{Bv.r+1}')
        else:
            A(f'v_pk_mul_f32 {P(W1)}, {P(W1)}, s[42:43]')
            A(f'v_pk_mul_f32 {P(W2)}, {P(W2)}, s[42:43]')
            A(f'v_pk_add_f32 {P(E)}, {P(Av.r)}, {P(Bv.r)} neg_hi:[0,1]')
            A(f'v_pk_add_f32 {P(O)}, {P(Av.r)}, {P(Bv.r)} neg_lo:[0,1]')
        T = cx.cmul(O, V(O), 's[44:45]')
        Pv = cx.addq(Av.r, V(E), T, 3)
        Qv = cx.addq(Bv.r, V(E), T, 1)
        Y1 = cx.cmul(Pv.r, Pv, P(W1))
        Y2 = cx.cmul(Qv.r, Qv, P(W2), conj=True)
        S1 = cx.addq(E, Y1, Y2, 0)
        D1 = cx.addq(O, Y1, Y2, 2)
        U = cx.cmul(O, D1, 's[44:45]', conj=True)
        z1[k3] = cx.addq(Av.r, S1, U, 1)
        if OPT.get('scalar'):
            A(f'v_add_f32 v{Bv.r}, v{E}, v{O+1}'); A(f'v_sub_f32 v{Bv.r+1}, v{O}, v{E+1}')
        else:
            A(f'v_pk_add_f32 {P(Bv.r)}, {P(E)}, {P(O)} op_sel:[0,1] op_sel_hi:[1,0] neg_hi:[1,0]')
        z2[7-k3] = V(Bv.r)
        pool.put(E); pool.put(O)
    A.stamp(4)
    A('s_cmp_eq_u32 s48, 0')
    A(f's_cbranch_scc1 L_{tag}_nopf')
    A(f's_mov_b32 s36, {WT_OFF + 256*8192}')
    A(f's_mov_b32 s37, {WT_OFF + 256*8192 + 4096}')
    wloads(WR1, WR2, 36, 36)
    A.label(f'L_{tag}_nopf')
    if OPT.get('hyb') == 2:
        cx = CxS(A, pool)
    y = cx.dft(z1, +1, consts)
    for n3 in range(8):
        v = cx.resolve(y[n3])
        A(f'ds_write_b64 v11, {P(v.r)} offset:{n3*8}')
        pool.put(v.r)
    A('s_cmp_eq_u32 s46, 1')
    A(f's_cbranch_scc1 L_{tag}_mnext')
    y = cx.dft(z2, +1, consts)
    for n3 in range(8):
        v = cx.resolve(y[n3])
        A(f'ds_write_b64 v13, {P(v.r)} offset:{n3*8}')
        pool.put(v.r)
    A(f's_branch L_{tag}_st3done')
    A.label(f'L_{tag}_mnext')
    A('s_cmp_eq_u32 s48, 0')
    A(f's_cbranch_scc1 L_{tag}_st3done')
    A('s_mov_b32 s48, 0')
    A(f'v_add_u32 v11, {CS2*8}, v11')
    A(f'v_add_u32 v13, {CS2*8}, v13')
    A('s_mov_b32 s44, 0')
    A('s_mov_b32 s45, -1.0')
    A(f's_branch L_{tag}_st3')
    A.label(f'L_{tag}_st3done')
    pool.free = sorted(set(range(80, 140, 2)))
    A('s_waitcnt lgkmcnt(0)')
    A('s_barrier')
    x = []
    for k2 in range(16):
        r = pool.get()
        A(f'ds_read_b64 {P(r)}, v10 offset:{k2*16*P2P*8}')
        x.append(V(r))
    A('s_waitcnt lgkmcnt(0)')
    A('s_barrier')
    for k2 in range(16):
        x[k2] = cx.cmul(x[k2].r, x[k2], P(TW[k2]) if k2 else P(T8), conj=True)
    y = cx.dft(x, +1, consts)
    for n2 in range(16):
        v = cx.resolve(y[n2])
        A(f'ds_write_b64 v8, {P(v.r)} offset:{n2*64}')
        pool.put(v.r)
    gen_tw(A, 4, 16, TW)
    A('s_waitcnt lgkmcnt(0)')
    A('s_barrier')
    x = []
    for k1 in range(16):
        r = pool.get()
        A(f'ds_read_b64 {P(r)}, v5 offset:{k1*K1S*8}')
        x.append(V(r))
    A('v_lshlrev_b32 v3, 2, v2')
    A('s_lshl_b32 s19, s18, 13')
    A(f's_add_u32 s19, s19, {ZP_OFF}')
    A('s_waitcnt lgkmcnt(0)')
    for k1 in range(1, 16):
        x[k1] = cx.cmul(x[k1].r, x[k1], P(TW[k1]), conj=True)
    y = cx.dft(x, +1, consts)
    A.stamp(5)
    for n1 in range(16):
        v = cx.resolve(y[n1])
        A(f'v_cvt_pk_bf16_f32 v{v.r}, v{v.r}, v{v.r+1}')
        A(f'buffer_store_dword v{v.r}, v3, s[12:15], s19 offen offset:{(n1%8)*512}')
        if n1 == 7: A('s_add_u32 s19, s19, 4096')
    A.stamp(6)
    A.stamp_flush(7, 12, 0)
    A('s_endpgm')
    return 156
```

```python
from asmlib import *
from kA import srd
from roles_c import *
from roles_b import US, UCH, KCH, sigbase, LOG2E
from roles_e import KG_P, KG_X, KG_T
import math
def role_kgen5(A, tag):
    A.stamp(0)
    A('s_load_dwordx8 s[64:71], s[0:1], 32')
    A('s_load_dwordx2 s[72:73], s[0:1], 64')
    A('s_load_dwordx2 s[80:81], s[0:1], 96')
    A('v_lshrrev_b32 v1, 6, v0')
    A('s_nop 0')
    A('v_readfirstlane_b32 s30, v1')
    A('v_and_b32 v2, 63, v0')
    A('s_lshr_b32 s28, s30, 1')
    A('s_and_b32 s29, s30, 1')
    A('s_lshl_b32 s31, s2, 1')
    A('s_add_u32 s31, s31, s28')
    A('s_waitcnt lgkmcnt(0)')
    srd(A, 8, 64, 262144)
    srd(A, 12, 66, 262144)
    srd(A, 20, 68, 262144)
    srd(A, 24, 70, 262144)
    srd(A, 32, 72, 2048)
    srd(A, 44, 80, WS_BYTES)
    A('v_lshlrev_b32 v3, 1, v2')
    A('s_lshl_b32 s48, s31, 8')
    A('s_lshl_b32 s49, s29, 7')
    A('s_add_u32 s48, s48, s49')
    A('s_lshl_b32 s49, s31, 1')
    A('v_mov_b32 v4, 0')
    A('buffer_load_short_d16_hi v24, v3, s[8:11], s48 offen')
    A('buffer_load_short_d16_hi v25, v3, s[12:15], s48 offen')
    A('buffer_load_short_d16_hi v26, v3, s[20:23], s48 offen')
    A('buffer_load_short_d16_hi v27, v3, s[24:27], s48 offen')
    A('buffer_load_short_d16_hi v14, v4, s[32:35], s49 offen')
    A('s_lshl_b32 s51, s30, 10')
    A('v_lshlrev_b32 v7, 4, v2')
    A('v_add_u32 v7, s51, v7')
    A('v_and_b32 v16, 15, v2')
    A('v_lshrrev_b32 v17, 4, v2')
    A('v_cvt_f32_u32 v18, v16')
    A(f'v_mul_f32 v19, 0x{f2u(16.0):08x}, v18')
    A('v_cmp_eq_u32 s[54:55], 0, v16')
    A(f'v_mov_b32 v20, 0x{f2u(256.0):08x}')
    A('s_nop 0')
    A('v_cndmask_b32 v19, v19, v20, s[54:55]')
    A('v_lshlrev_b32 v21, 6, v17')
    A('v_add_u32 v21, s51, v21')
    ACC = [32 + 4*h for h in range(4)]
    for r in range(32, 48): A(f'v_mov_b32 v{r}, 0')
    A('s_waitcnt vmcnt(0)')
    A(f'v_mul_f32 v14, 0x{f2u(LOG2E):08x}, v14')
    A('v_exp_f32 v14, v14')
    A(f'v_mul_f32 v24, 0x{f2u(LOG2E):08x}, v24')
    A('v_exp_f32 v24, v24')
    A('v_cvt_pk_bf16_f32 v14, v14, v14')
    A('v_lshlrev_b32 v14, 16, v14')
    A('v_cvt_pk_bf16_f32 v24, v24, v24')
    A('v_lshlrev_b32 v24, 16, v24')
    A('v_mul_f32 v25, v25, v14')
    A('v_mul_f32 v24, v24, v14')
    A(f'v_mul_f32 v24, 0x{f2u(-LOG2E):08x}, v24')
    A(f'v_mul_f32 v25, 0x{f2u(1/(2*math.pi)):08x}, v25')
    A('v_add_f32 v14, v14, v14')
    A('v_mul_f32 v26, v26, v14')
    A('v_mul_f32 v27, v27, v14')
    A('v_max_f32 v28, abs(v26), abs(v27)' if False else 'v_max_f32_e64 v28, |v26|, |v27|')
    for off in (0x041F, 0x081F, 0x101F, 0x201F, 0x401F):
        A(f'ds_swizzle_b32 v29, v28 offset:{off}')
        A('s_waitcnt lgkmcnt(0)')
        A('v_max_f32 v28, v28, v29')
    A('s_nop 0')
    A('v_readlane_b32 s40, v28, 0')
    A('v_readlane_b32 s41, v28, 32')
    A('s_nop 1')
    A('v_mov_b32 v28, s40')
    A('v_max_f32 v28, s41, v28')
    A('v_frexp_exp_i32_f32 v29, v28')
    A('v_sub_u32 v30, 0, v29')
    A('v_ldexp_f32 v26, v26, v30')
    A('v_ldexp_f32 v27, v27, v30')
    A('v_cvt_pk_f16_f32 v26, v26, v27')
    A('ds_write_b128 v7, v[24:27]')
    A.stamp(1)
    GF = [48 + 4*h for h in range(4)]
    EF = [64 + 4*h for h in range(4)]
    PR = 80
    pool = Pool(96, 0); pool.free = [10, 12, 22]
    cx = Cx(A, pool)
    A('s_mov_b32 s56, 0')
    A.label(f'L_{tag}_kg')
    for q in range(4):
        A(f'ds_read_b128 v[{PR+4*q}:{PR+4*q+3}], v21 offset:{16*q}')
    A('v_add_u32 v21, 256, v21')
    for q in range(4):
        A(f's_waitcnt lgkmcnt({3-q})')
        p = PR + 4*q
        E = pool.get(); F = pool.get(); t = pool.get()
        for (Z, fl, sg) in ((E, 18, '-'), (F, 19, '')):
            A(f'v_mul_f32 v{t}, v{p}, v{fl}')
            A(f'v_mul_f32 v{t+1}, v{p+1}, v{fl}')
            A(f'v_exp_f32 v{t}, v{t}')
            A(f'v_fract_f32 v{t+1}, v{t+1}')
            A(f'v_cos_f32 v{Z}, v{t+1}')
            A(f'v_sin_f32_e64 v{Z+1}, {sg}v{t+1}')
            A(f'v_mul_f32 v{Z}, v{Z}, v{t}')
            A(f'v_mul_f32 v{Z+1}, v{Z+1}, v{t}')
        A(f'v_cvt_pk_f16_f32 v{EF[0]+q}, v{E}, v{E+1}')
        A(f'v_cvt_pk_f16_f32 v{F}, v{F}, v{F+1}')
        def hmul(d, x, w):
            A(f'v_pk_mul_f16 v{t}, v{x}, v{w} op_sel:[0,0] op_sel_hi:[1,0]')
            A(f'v_pk_fma_f16 v{d}, v{x}, v{w}, v{t} op_sel:[1,1,0] op_sel_hi:[0,1,1] neg_lo:[0,1,0]')
        hmul(t+1, F, p+2)
        A(f'v_cndmask_b32 v{GF[0]+q}, v{t+1}, v{p+2}, s[54:55]')
        hmul(GF[1]+q, t+1, F)
        hmul(F, F, F)
        hmul(EF[1]+q, EF[0]+q, EF[0]+q)
        hmul(GF[2]+q, GF[1]+q, F)
        hmul(F, F, F)
        hmul(EF[2]+q, EF[1]+q, EF[1]+q)
        hmul(GF[3]+q, GF[2]+q, F)
        hmul(EF[3]+q, EF[2]+q, EF[2]+q)
        pool.put(E); pool.put(F); pool.put(t)
    A('s_nop 1')
    for h in range(4):
        A(f'v_mfma_f32_16x16x32_f16 v[{ACC[h]}:{ACC[h]+3}], v[{GF[h]}:{GF[h]+3}], v[{EF[h]}:{EF[h]+3}], v[{ACC[h]}:{ACC[h]+3}]')
    A('s_add_u32 s56, s56, 1')
    A('s_cmp_lt_u32 s56, 4')
    A(f's_cbranch_scc1 L_{tag}_kg')
    A.stamp(2)
    A('s_lshl_b32 s52, s30, 12')
    A(f's_add_u32 s52, s52, {KG_X}')
    A('s_xor_b32 s53, s30, 1')
    A('s_lshl_b32 s53, s53, 12')
    A(f's_add_u32 s53, s53, {KG_X}')
    A('v_lshlrev_b32 v5, 4, v2')
    A('v_add_u32 v6, s52, v5')
    A('v_add_u32 v8, s53, v5')
    A(f's_mul_i32 s58, s30, 1344')
    A(f's_add_u32 s58, s58, {KG_T}')
    A('v_lshlrev_b32 v22, 7, v17')
    A('v_lshl_add_u32 v22, v16, 1, v22')
    A('v_add_u32 v22, s58, v22')
    A('s_nop 3')
    for r in range(32, 48): A(f'v_ldexp_f32 v{r}, v{r}, v29')
    for h in range(4):
        A(f'ds_write_b128 v6, v[{ACC[h]}:{ACC[h]+3}] offset:{1024*h}')
    A('s_waitcnt lgkmcnt(0)')
    A('s_barrier')
    for h in range(4):
        A(f'ds_read_b128 v[{48+4*h}:{51+4*h}], v8 offset:{1024*h}')
    for h in range(4):
        A(f's_waitcnt lgkmcnt({3-h})')
        for r in range(4):
            A(f'v_add_f32 v{ACC[h]+r}, v{ACC[h]+r}, v{48+4*h+r}')
            A(f'v_cvt_pk_bf16_f32 v{ACC[h]+r}, v{ACC[h]+r}, v{ACC[h]+r}')
    for r in range(4):
        A(f'ds_write_b16 v22, v{ACC[0]+r} offset:{32*r}')
    A('s_mov_b32 exec_lo, 0')
    for h in range(1, 4):
        for r in range(4):
            A(f'ds_write_b16 v22, v{ACC[h]+r} offset:{32*r + 256*h}')
    A('s_mov_b64 exec, 1')
    A(f'ds_write_b16 v22, v{ACC[3]} offset:1280')
    A('s_mov_b64 exec, -1')
    A('v_lshlrev_b32 v24, 4, v2')
    A('v_add_u32 v25, s58, v24')
    A(f's_mul_i32 s49, s31, 1408')
    A(f's_add_u32 s49, s49, {KT_OFF}')
    A('s_cmp_eq_u32 s29, 1')
    A(f's_cbranch_scc1 L_{tag}_p1')
    A('ds_read_b128 v[48:51], v25')
    A('s_waitcnt lgkmcnt(0)')
    A('buffer_store_dwordx4 v[48:51], v24, s[44:47], s49 offen')
    A(f's_branch L_{tag}_done')
    A.label(f'L_{tag}_p1')
    A('s_mov_b64 exec, 0x3ffff')
    A('ds_read_b128 v[48:51], v25 offset:1024')
    A('s_waitcnt lgkmcnt(0)')
    A('buffer_store_dwordx4 v[48:51], v24, s[44:47], s49 offen offset:1024')
    A('s_mov_b64 exec, -1')
    A.label(f'L_{tag}_done')
    A.stamp(3)
    A.stamp_flush(4, 44, 0)
    A('s_endpgm')
    return 96

def role_conv6(A, tag):
    A.stamp(0)
    A('s_load_dwordx2 s[76:77], s[0:1], 72')
    A('s_load_dwordx2 s[80:81], s[0:1], 96')
    A('v_lshrrev_b32 v1, 6, v0')
    A('s_nop 0')
    A('v_readfirstlane_b32 s30, v1')
    A('v_and_b32 v2, 63, v0')
    A('s_lshr_b32 s26, s30, 1')
    A('s_and_b32 s27, s30, 1')
    A('s_lshl_b32 s31, s2, 1')
    A('s_add_u32 s31, s31, s26')
    A(f's_mul_i32 s48, s26, {UCH+KCH}')
    A(f's_add_u32 s59, s48, {UCH}')
    A('s_waitcnt lgkmcnt(0)')
    srd(A, 36, 76, 2048)
    srd(A, 44, 80, WS_BYTES)
    A('v_lshlrev_b32 v3, 4, v2')
    A('s_lshl_b32 s49, s31, 12')
    A('s_lshl_b32 s24, s27, 11')
    A('s_add_u32 s49, s49, s24')
    A(f's_add_u32 s50, s49, {UT_OFF}')
    UR = 112
    for i in range(2):
        A(f'buffer_load_dwordx4 v[{UR+4*i}:{UR+4*i+3}], v3, s[44:47], s50 offen offset:{1024*i}')
    A('v_lshlrev_b32 v26, 3, v2')
    A('s_mul_i32 s51, s31, 1408')
    A(f's_add_u32 s51, s51, {KT_OFF}')
    A('s_lshl_b32 s25, s27, 9')
    A('buffer_load_dwordx4 v[120:123], v3, s[44:47], s51 offen')
    A('buffer_load_dwordx4 v[124:127], v3, s[44:47], s51 offen offset:1024')
    A('v_mov_b32 v4, 0')
    A('s_lshl_b32 s53, s31, 1')
    A('buffer_load_ushort v15, v4, s[36:39], s53 offen')
    A('v_mov_b32 v20, 0'); A('v_mov_b32 v21, 0'); A('v_mov_b32 v22, 0'); A('v_mov_b32 v23, 0')
    A('s_mul_i32 s24, s27, 1280')
    A('s_add_u32 s24, s24, s48')
    A('v_add_u32 v6, s24, v3')
    A('ds_write_b128 v6, v[20:23]')
    A('s_mov_b64 exec, 0xffff')
    A('ds_write_b128 v6, v[20:23] offset:1024')
    A('s_mov_b64 exec, -1')
    A('v_lshrrev_b32 v7, 2, v2')
    A(f'v_mul_u32_u24 v7, {US}, v7')
    A('v_and_b32 v8, 3, v2')
    A('v_lshl_add_u32 v7, v8, 4, v7')
    A(f's_mul_i32 s24, s27, {32*US}')
    A('s_add_u32 s22, s24, s48')
    A('v_add_u32 v9, s22, v7')
    A('s_add_u32 s23, s59, s25')
    A('v_add_u32 v23, s23, v26')
    A('s_add_u32 s58, s59, 14400')
    A('v_add_u32 v10, s58, v3')
    A('s_waitcnt vmcnt(1)')
    A('ds_write_b128 v10, v[120:123]')
    A('s_mov_b64 exec, 0x3ffff')
    A('ds_write_b128 v10, v[124:127] offset:1024')
    A('s_mov_b64 exec, -1')
    for i in range(2):
        A(f'ds_write_b128 v9, v[{UR+4*i}:{UR+4*i+3}] offset:{(32+16*i)*US}')
    A(f's_sub_u32 s56, s58, {2*(0x4380-256)}')
    A('v_lshlrev_b32 v24, 2, v2')
    A('s_lshl_b32 s24, s27, 8')
    A('v_add_u32 v24, s24, v24')
    A('v_cvt_f32_u32 v22, v24')
    G0 = 64; G1 = 80
    for i in range(5):
        if i == 0:
            for e in range(4):
                r = (G0 if e % 2 == 0 else G1) + 2*i + e//2
                A(f'v_add_u32 v25, {-32+e}, v24')
                A('v_max_i32 v25, 0, v25')
                A('v_cvt_f32_u32 v27, v25')
                A('v_cvt_pk_bf16_f32 v27, v27, v27')
                A('v_and_b32 v27, 0xffff, v27')
                A(f'v_subrev_u32 v27, {0x4380-256}, v27')
                A('v_cmp_gt_u32 vcc, 128, v25')
                A('s_nop 1')
                A('v_cndmask_b32 v25, v27, v25, vcc')
                A('v_lshl_add_u32 v25, v25, 1, s58')
                op = 'ds_read_u16_d16' if e % 2 == 0 else 'ds_read_u16_d16_hi'
                A(f'{op} v{r}, v25')
        else:
            for e2 in range(2):
                A(f'v_add_f32 v25, 0x{f2u(float(512*i-32+2*e2)):08x}, v22')
                A(f'v_add_f32 v26, 0x{f2u(float(512*i-32+2*e2+1)):08x}, v22')
                if i == 4:
                    A(f'v_min_f32 v25, 0x{f2u(2047.0):08x}, v25')
                    A(f'v_min_f32 v26, 0x{f2u(2047.0):08x}, v26')
                A('v_cvt_pk_bf16_f32 v25, v25, v26')
                A('v_lshrrev_b32 v26, 16, v25')
                A('v_and_b32 v25, 0xffff, v25')
                A('v_lshl_add_u32 v25, v25, 1, s56')
                A('v_lshl_add_u32 v26, v26, 1, s56')
                A(f'ds_read_u16_d16 v{G0+2*i+e2}, v25')
                A(f'ds_read_u16_d16_hi v{G1+2*i+e2}, v26')
    A('s_waitcnt lgkmcnt(0)')
    for r in range(10): A(f'v_or_b32 v{G0+r}, v{G0+r}, v{G1+r}')
    A('v_cmp_gt_u32 vcc, 32, v24')
    A('s_nop 1')
    A(f'v_cndmask_b32_e64 v{G0}, v{G0}, 0, vcc')
    A(f'v_cndmask_b32_e64 v{G0+1}, v{G0+1}, 0, vcc')
    for i in range(4):
        A(f'ds_write_b64 v23, v[{G0+2*i}:{G0+2*i+1}] offset:{1024*i}')
    A('s_cmp_eq_u32 s27, 1')
    A(f's_cbranch_scc1 L_{tag}_c0')
    A('s_mov_b64 exec, 0xff')
    A(f'ds_write_b64 v23, v[{G0+8}:{G0+9}] offset:4096')
    A('s_mov_b64 exec, -1')
    A.label(f'L_{tag}_c0')
    A('s_waitcnt lgkmcnt(0)')
    A('s_barrier')
    H0 = 80
    for i in range(5):
        A(f'ds_read_b64 v[{H0+2*i}:{H0+2*i+1}], v23 offset:{1024*i+8}')
    A('s_waitcnt lgkmcnt(0)')
    for i in range(5):
        if i == 4:
            A('s_cmp_eq_u32 s27, 1')
            A(f's_cbranch_scc1 L_{tag}_kdone')
        d0, d1, d2, d3 = G0+2*i, G0+2*i+1, H0+2*i, H0+2*i+1
        if i == 4: A('s_mov_b64 exec, 0x7f')
        A(f'v_alignbit_b32 v26, v{d1}, v{d0}, 16')
        A(f'v_alignbit_b32 v27, v{d2}, v{d1}, 16')
        A(f'v_mov_b32 v28, v27')
        A(f'v_alignbit_b32 v29, v{d3}, v{d2}, 16')
        A(f'ds_write_b64 v23, v[26:27] offset:{1024*i + sigbase(1)}')
        A(f'v_mov_b32 v30, v{d1}')
        A(f'v_mov_b32 v31, v{d2}')
        A(f'ds_write_b64 v23, v[30:31] offset:{1024*i + sigbase(2)}')
        A(f'ds_write_b64 v23, v[28:29] offset:{1024*i + sigbase(3)}')
    A('s_mov_b64 exec, -1')
    A.label(f'L_{tag}_kdone')
    A.stamp(1)
    A('v_and_b32 v16, 31, v2')
    A('v_lshrrev_b32 v17, 5, v2')
    A('v_add_u32 v18, 1, v16')
    A('v_and_b32 v18, 3, v18')
    A('v_mul_u32_u24 v19, 4160, v18')
    A('v_cmp_lt_u32 vcc, 0, v18')
    A('s_nop 1')
    A('v_cndmask_b32_e64 v20, 0, 8, vcc')
    A('v_add_u32 v19, v19, v20')
    A('v_lshlrev_b32 v20, 3, v17')
    A('v_sub_u32 v21, v16, v20')
    A('v_sub_u32 v21, v21, v18')
    A('v_add_u32 v21, 9, v21')
    A('v_lshl_add_u32 v19, v21, 1, v19')
    A('s_lshl_b32 s24, s27, 5')
    A('s_sub_u32 s22, s59, s24')
    A('v_add_u32 v19, s22, v19')
    A(f'v_mul_u32_u24 v20, {US}, v16')
    A('v_lshl_add_u32 v20, v17, 4, v20')
    A(f'v_add_u32 v20, {US}, v20')
    A('s_add_u32 s22, s48, s24')
    A('v_add_u32 v20, s22, v20')
    C0 = 32; C1 = 48
    for r in range(32, 64): A(f'v_mov_b32 v{r}, 0')
    A('s_waitcnt lgkmcnt(0)')
    A('s_barrier')
    import roles_f
    NB = roles_f.OPT.get('nb', 4); FR = 64
    def issue(m):
        b = FR + 12*(m % NB)
        A(f'ds_read_b64 v[{b}:{b+1}], v19 offset:{32*(2*m+1)}')
        A(f'ds_read_b64 v[{b+2}:{b+3}], v19 offset:{32*(2*m+1)+8}')
        n = 2
        if m < 32:
            A(f'ds_read_b128 v[{b+4}:{b+7}], v20 offset:{(-m+31)*US}'); n += 1
        A(f'ds_read_b128 v[{b+8}:{b+11}], v20 offset:{(32-m+31)*US}'); n += 1
        return n
    cnt = []
    for k in range(NB-1): cnt.append(issue(k))
    for m in range(64):
        if m + NB - 1 < 64: cnt.append(issue(m+NB-1))
        pend = sum(cnt[m+1:])
        A(f's_waitcnt lgkmcnt({min(pend,15)})')
        b = FR + 12*(m % NB)
        if m < 32:
            A(f'v_mfma_f32_32x32x16_bf16 v[{C0}:{C0+15}], v[{b}:{b+3}], v[{b+4}:{b+7}], v[{C0}:{C0+15}]')
        A(f'v_mfma_f32_32x32x16_bf16 v[{C1}:{C1+15}], v[{b}:{b+3}], v[{b+8}:{b+11}], v[{C1}:{C1+15}]')
    A.stamp(2)
    A(f'v_mul_u32_u24 v21, {US}, v16')
    A('v_lshlrev_b32 v22, 3, v17')
    A('v_add_u32 v24, v21, v22')
    A('v_sub_u32 v21, v21, v22')
    A(f'v_add_u32 v21, {32*US+8}, v21')
    A(f's_mul_i32 s24, s27, {32*US}')
    A('s_add_u32 s22, s48, s24')
    A('v_add_u32 v21, s22, v21')
    UE = 64
    for q in range(4):
        A(f'ds_read_b64 v[{UE+2*q}:{UE+2*q+1}], v21 offset:{16*q}')
    A('s_lshl_b32 s24, s27, 12')
    A('s_add_u32 s22, s59, s24')
    A('v_add_u32 v25, s22, v3')
    A('s_xor_b32 s24, s24, 4096')
    A('s_add_u32 s22, s59, s24')
    A('v_add_u32 v26, s22, v3')
    A('s_barrier')
    A('s_cmp_eq_u32 s27, 0')
    A(f's_cbranch_scc1 L_{tag}_noswap')
    for r in range(16):
        A(f'v_swap_b32 v{C0+r}, v{C1+r}')
    A.label(f'L_{tag}_noswap')
    for q in range(4):
        A(f'ds_write_b128 v25, v[{C1+4*q}:{C1+4*q+3}] offset:{1024*q}')
    A('s_waitcnt lgkmcnt(0)')
    A('s_barrier')
    for q in range(4):
        A(f'ds_read_b128 v[{C1+4*q}:{C1+4*q+3}], v26 offset:{1024*q}')
    A('s_waitcnt vmcnt(0)')
    A('v_lshlrev_b32 v15, 16, v15')
    A('s_mul_i32 s24, s27, 2560')
    A('s_add_u32 s24, s24, s59')
    A('s_add_u32 s24, s24, 8192')
    A('v_add_u32 v24, s24, v24')
    A('v_add_u32 v7, s24, v7')
    for q in range(4):
        A(f's_waitcnt lgkmcnt({3-q})')
        ur = UE + 2*q
        for e in range(4):
            pos = 3 - e
            src = ur + pos//2
            o = 26 + e
            A(f'v_add_f32 v{C0+4*q+e}, v{C0+4*q+e}, v{C1+4*q+e}')
            if pos % 2 == 0: A(f'v_lshlrev_b32 v{o}, 16, v{src}')
            else: A(f'v_and_b32 v{o}, 0xffff0000, v{src}')
            A(f'v_mul_f32 v{o}, v{o}, v15')
            A(f'v_cvt_pk_bf16_f32 v{o}, v{o}, v{C0+4*q+e}')
            A(f'v_lshlrev_b32 v25, 16, v{o}')
            A(f'v_and_b32 v{o}, 0xffff0000, v{o}')
            A(f'v_add_f32 v{o}, v{o}, v25')
        A('v_cvt_pk_bf16_f32 v30, v26, v27')
        A('v_cvt_pk_bf16_f32 v31, v28, v29')
        A(f'ds_write_b64 v24, v[30:31] offset:{16*q}')
    for i in range(2):
        A(f'ds_read_b128 v[{UR+4*i}:{UR+4*i+3}], v7 offset:{16*i*US}')
    A(f's_add_u32 s50, s49, {YT_OFF}')
    for i in range(2):
        A(f's_waitcnt lgkmcnt({1-i})')
        A(f'buffer_store_dwordx4 v[{UR+4*i}:{UR+4*i+3}], v3, s[44:47], s50 offen offset:{1024*i}')
    A.stamp(3)
    A.stamp_flush(4, 44, 0)
    A('s_endpgm')
    return 128

def role_conv7(A, tag):
    A.stamp(0)
    A('s_load_dwordx2 s[76:77], s[0:1], 72')
    A('s_load_dwordx2 s[80:81], s[0:1], 96')
    A('v_lshrrev_b32 v1, 6, v0')
    A('s_nop 0')
    A('v_readfirstlane_b32 s30, v1')
    A('v_and_b32 v2, 63, v0')
    A('s_lshr_b32 s26, s30, 1')
    A('s_and_b32 s27, s30, 1')
    A('s_lshl_b32 s31, s2, 1')
    A('s_add_u32 s31, s31, s26')
    A(f's_mul_i32 s48, s26, {UCH+KCH}')
    A(f's_add_u32 s59, s48, {UCH}')
    A('s_waitcnt lgkmcnt(0)')
    srd(A, 36, 76, 2048)
    srd(A, 44, 80, WS_BYTES)
    A('v_lshlrev_b32 v3, 4, v2')
    A('s_lshl_b32 s49, s31, 12')
    A('s_lshl_b32 s24, s27, 11')
    A('s_add_u32 s49, s49, s24')
    A(f's_add_u32 s50, s49, {UT_OFF}')
    UR = 112
    for i in range(2):
        A(f'buffer_load_dwordx4 v[{UR+4*i}:{UR+4*i+3}], v3, s[44:47], s50 offen offset:{1024*i}')
    A('v_lshlrev_b32 v26, 3, v2')
    A('s_mul_i32 s51, s31, 1408')
    A(f's_add_u32 s51, s51, {KT_OFF}')
    A('s_lshl_b32 s25, s27, 9')
    A('buffer_load_dwordx4 v[120:123], v3, s[44:47], s51 offen')
    A('buffer_load_dwordx4 v[124:127], v3, s[44:47], s51 offen offset:1024')
    A('v_mov_b32 v4, 0')
    A('s_lshl_b32 s53, s31, 1')
    A('buffer_load_ushort v15, v4, s[36:39], s53 offen')
    A('v_mov_b32 v20, 0'); A('v_mov_b32 v21, 0'); A('v_mov_b32 v22, 0'); A('v_mov_b32 v23, 0')
    A('s_mul_i32 s24, s27, 1280')
    A('s_add_u32 s24, s24, s48')
    A('v_add_u32 v6, s24, v3')
    A('ds_write_b128 v6, v[20:23]')
    A('s_mov_b64 exec, 0xffff')
    A('ds_write_b128 v6, v[20:23] offset:1024')
    A('s_mov_b64 exec, -1')
    A('v_lshrrev_b32 v7, 2, v2')
    A(f'v_mul_u32_u24 v7, {US}, v7')
    A('v_and_b32 v8, 3, v2')
    A('v_lshl_add_u32 v7, v8, 4, v7')
    A(f's_mul_i32 s24, s27, {32*US}')
    A('s_add_u32 s22, s24, s48')
    A('v_add_u32 v9, s22, v7')
    A('s_add_u32 s23, s59, s25')
    A('v_add_u32 v23, s23, v26')
    A('s_add_u32 s58, s59, 14400')
    A('v_add_u32 v10, s58, v3')
    A(f's_sub_u32 s56, s58, {2*(0x4380-256)}')
    A('v_lshlrev_b32 v24, 2, v2')
    A('s_lshl_b32 s24, s27, 8')
    A('v_add_u32 v24, s24, v24')
    A('v_cvt_f32_u32 v22, v24')
    G0 = 64; G1 = 80; AD = 128
    for i in range(5):
        if i == 0:
            for e in range(4):
                ad = AD + e
                A(f'v_add_u32 v25, {-32+e}, v24')
                A('v_max_i32 v25, 0, v25')
                A('v_cvt_f32_u32 v27, v25')
                A('v_cvt_pk_bf16_f32 v27, v27, v27')
                A('v_and_b32 v27, 0xffff, v27')
                A(f'v_subrev_u32 v27, {0x4380-256}, v27')
                A('v_cmp_gt_u32 vcc, 128, v25')
                A('s_nop 1')
                A('v_cndmask_b32 v25, v27, v25, vcc')
                A(f'v_lshl_add_u32 v{ad}, v25, 1, s58')
        else:
            for e2 in range(2):
                ad = AD + 4*i + 2*e2
                A(f'v_add_f32 v25, 0x{f2u(float(512*i-32+2*e2)):08x}, v22')
                A(f'v_add_f32 v26, 0x{f2u(float(512*i-32+2*e2+1)):08x}, v22')
                if i == 4:
                    A(f'v_min_f32 v25, 0x{f2u(2047.0):08x}, v25')
                    A(f'v_min_f32 v26, 0x{f2u(2047.0):08x}, v26')
                A('v_cvt_pk_bf16_f32 v25, v25, v26')
                A('v_lshrrev_b32 v26, 16, v25')
                A('v_and_b32 v25, 0xffff, v25')
                A(f'v_lshl_add_u32 v{ad}, v25, 1, s56')
                A(f'v_lshl_add_u32 v{ad+1}, v26, 1, s56')
    A('v_and_b32 v16, 31, v2')
    A('v_lshrrev_b32 v17, 5, v2')
    A('v_add_u32 v18, 1, v16')
    A('v_and_b32 v18, 3, v18')
    A('v_mul_u32_u24 v19, 4160, v18')
    A('v_cmp_lt_u32 vcc, 0, v18')
    A('s_nop 1')
    A('v_cndmask_b32_e64 v20, 0, 8, vcc')
    A('v_add_u32 v19, v19, v20')
    A('v_lshlrev_b32 v20, 3, v17')
    A('v_sub_u32 v21, v16, v20')
    A('v_sub_u32 v21, v21, v18')
    A('v_add_u32 v21, 9, v21')
    A('v_lshl_add_u32 v19, v21, 1, v19')
    A('s_lshl_b32 s24, s27, 5')
    A('s_sub_u32 s22, s59, s24')
    A('v_add_u32 v19, s22, v19')
    A(f'v_mul_u32_u24 v20, {US}, v16')
    A('v_lshl_add_u32 v20, v17, 4, v20')
    A(f'v_add_u32 v20, {US}, v20')
    A('s_add_u32 s22, s48, s24')
    A('v_add_u32 v20, s22, v20')
    for r in range(32, 64): A(f'v_mov_b32 v{r}, 0')
    A('s_waitcnt vmcnt(1)')
    A('ds_write_b128 v10, v[120:123]')
    A('s_mov_b64 exec, 0x3ffff')
    A('ds_write_b128 v10, v[124:127] offset:1024')
    A('s_mov_b64 exec, -1')
    for i in range(5):
        for e in range(4):
            r = (G0 if e % 2 == 0 else G1) + 2*i + e//2
            op = 'ds_read_u16_d16' if e % 2 == 0 else 'ds_read_u16_d16_hi'
            A(f'{op} v{r}, v{AD+4*i+e}')
    for i in range(2):
        A(f'ds_write_b128 v9, v[{UR+4*i}:{UR+4*i+3}] offset:{(32+16*i)*US}')
    A('s_waitcnt lgkmcnt(0)')
    for r in range(10): A(f'v_or_b32 v{G0+r}, v{G0+r}, v{G1+r}')
    A('v_cmp_gt_u32 vcc, 32, v24')
    A('s_nop 1')
    A(f'v_cndmask_b32_e64 v{G0}, v{G0}, 0, vcc')
    A(f'v_cndmask_b32_e64 v{G0+1}, v{G0+1}, 0, vcc')
    for i in range(4):
        A(f'ds_write_b64 v23, v[{G0+2*i}:{G0+2*i+1}] offset:{1024*i}')
    A('s_cmp_eq_u32 s27, 1')
    A(f's_cbranch_scc1 L_{tag}_c0')
    A('s_mov_b64 exec, 0xff')
    A(f'ds_write_b64 v23, v[{G0+8}:{G0+9}] offset:4096')
    A('s_mov_b64 exec, -1')
    A.label(f'L_{tag}_c0')
    A('s_waitcnt lgkmcnt(0)')
    A('s_barrier')
    H0 = 80
    for i in range(5):
        A(f'ds_read_b64 v[{H0+2*i}:{H0+2*i+1}], v23 offset:{1024*i+8}')
    A('s_waitcnt lgkmcnt(0)')
    for i in range(5):
        if i == 4:
            A('s_cmp_eq_u32 s27, 1')
            A(f's_cbranch_scc1 L_{tag}_kdone')
        d0, d1, d2, d3 = G0+2*i, G0+2*i+1, H0+2*i, H0+2*i+1
        if i == 4: A('s_mov_b64 exec, 0x7f')
        A(f'v_alignbit_b32 v26, v{d1}, v{d0}, 16')
        A(f'v_alignbit_b32 v27, v{d2}, v{d1}, 16')
        A(f'v_mov_b32 v28, v27')
        A(f'v_alignbit_b32 v29, v{d3}, v{d2}, 16')
        A(f'ds_write_b64 v23, v[26:27] offset:{1024*i + sigbase(1)}')
        A(f'v_mov_b32 v30, v{d1}')
        A(f'v_mov_b32 v31, v{d2}')
        A(f'ds_write_b64 v23, v[30:31] offset:{1024*i + sigbase(2)}')
        A(f'ds_write_b64 v23, v[28:29] offset:{1024*i + sigbase(3)}')
    A('s_mov_b64 exec, -1')
    A.label(f'L_{tag}_kdone')
    A.stamp(1)
    C0 = 32; C1 = 48
    A('s_waitcnt lgkmcnt(0)')
    A('s_barrier')
    import roles_f
    NB = roles_f.OPT.get('nb', 4); FR = 64
    def issue(m):
        b = FR + 12*(m % NB)
        A(f'ds_read_b64 v[{b}:{b+1}], v19 offset:{32*(2*m+1)}')
        A(f'ds_read_b64 v[{b+2}:{b+3}], v19 offset:{32*(2*m+1)+8}')
        n = 2
        if m < 32:
            A(f'ds_read_b128 v[{b+4}:{b+7}], v20 offset:{(-m+31)*US}'); n += 1
        A(f'ds_read_b128 v[{b+8}:{b+11}], v20 offset:{(32-m+31)*US}'); n += 1
        return n
    cnt = []
    for k in range(NB-1): cnt.append(issue(k))
    for m in range(64):
        if m + NB - 1 < 64: cnt.append(issue(m+NB-1))
        pend = sum(cnt[m+1:])
        A(f's_waitcnt lgkmcnt({min(pend,15)})')
        b = FR + 12*(m % NB)
        if m < 32:
            A(f'v_mfma_f32_32x32x16_bf16 v[{C0}:{C0+15}], v[{b}:{b+3}], v[{b+4}:{b+7}], v[{C0}:{C0+15}]')
        A(f'v_mfma_f32_32x32x16_bf16 v[{C1}:{C1+15}], v[{b}:{b+3}], v[{b+8}:{b+11}], v[{C1}:{C1+15}]')
    A.stamp(2)
    A(f'v_mul_u32_u24 v21, {US}, v16')
    A('v_lshlrev_b32 v22, 3, v17')
    A('v_add_u32 v24, v21, v22')
    A('v_sub_u32 v21, v21, v22')
    A(f'v_add_u32 v21, {32*US+8}, v21')
    A(f's_mul_i32 s24, s27, {32*US}')
    A('s_add_u32 s22, s48, s24')
    A('v_add_u32 v21, s22, v21')
    UE = 64
    for q in range(4):
        A(f'ds_read_b64 v[{UE+2*q}:{UE+2*q+1}], v21 offset:{16*q}')
    A('s_lshl_b32 s24, s27, 12')
    A('s_add_u32 s22, s59, s24')
    A('v_add_u32 v25, s22, v3')
    A('s_xor_b32 s24, s24, 4096')
    A('s_add_u32 s22, s59, s24')
    A('v_add_u32 v26, s22, v3')
    A('s_barrier')
    A('s_cmp_eq_u32 s27, 0')
    A(f's_cbranch_scc1 L_{tag}_noswap')
    for r in range(16):
        A(f'v_swap_b32 v{C0+r}, v{C1+r}')
    A.label(f'L_{tag}_noswap')
    for q in range(4):
        A(f'ds_write_b128 v25, v[{C1+4*q}:{C1+4*q+3}] offset:{1024*q}')
    A('s_waitcnt lgkmcnt(0)')
    A('s_barrier')
    for q in range(4):
        A(f'ds_read_b128 v[{C1+4*q}:{C1+4*q+3}], v26 offset:{1024*q}')
    A('s_waitcnt vmcnt(0)')
    A('v_lshlrev_b32 v15, 16, v15')
    A('s_mul_i32 s24, s27, 2560')
    A('s_add_u32 s24, s24, s59')
    A('s_add_u32 s24, s24, 8192')
    A('v_add_u32 v24, s24, v24')
    A('v_add_u32 v7, s24, v7')
    for q in range(4):
        A(f's_waitcnt lgkmcnt({3-q})')
        ur = UE + 2*q
        for e in range(4):
            pos = 3 - e
            src = ur + pos//2
            o = 26 + e
            A(f'v_add_f32 v{C0+4*q+e}, v{C0+4*q+e}, v{C1+4*q+e}')
            if pos % 2 == 0: A(f'v_lshlrev_b32 v{o}, 16, v{src}')
            else: A(f'v_and_b32 v{o}, 0xffff0000, v{src}')
            A(f'v_mul_f32 v{o}, v{o}, v15')
            A(f'v_cvt_pk_bf16_f32 v{o}, v{o}, v{C0+4*q+e}')
            A(f'v_lshlrev_b32 v25, 16, v{o}')
            A(f'v_and_b32 v{o}, 0xffff0000, v{o}')
            A(f'v_add_f32 v{o}, v{o}, v25')
        A('v_cvt_pk_bf16_f32 v30, v26, v27')
        A('v_cvt_pk_bf16_f32 v31, v28, v29')
        A(f'ds_write_b64 v24, v[30:31] offset:{16*q}')
    for i in range(2):
        A(f'ds_read_b128 v[{UR+4*i}:{UR+4*i+3}], v7 offset:{16*i*US}')
    A(f's_add_u32 s50, s49, {YT_OFF}')
    for i in range(2):
        A(f's_waitcnt lgkmcnt({1-i})')
        A(f'buffer_store_dwordx4 v[{UR+4*i}:{UR+4*i+3}], v3, s[44:47], s50 offen offset:{1024*i}')
    A.stamp(3)
    A.stamp_flush(4, 44, 0)
    A('s_endpgm')
    return 148
```

```python
from asmlib import *
from kA import srd, gen_tw
from roles_c import *

OPT = {}
def role_col2(A, tag):
    A.stamp(0)
    if OPT.get('colprio'): A(f"s_setprio {OPT['colprio']}")
    A('s_load_dwordx2 s[28:29], s[0:1], 96')
    xmap4(A)
    consts = emit_w16_consts(A, 20)
    A('v_lshrrev_b32 v1, 7, v0')
    A('v_and_b32 v2, 127, v0')
    A('s_nop 0')
    A('v_readfirstlane_b32 s30, v1')
    A('s_sub_u32 s16, 512, s2')
    A('s_cmp_eq_u32 s2, 0')
    A('s_cselect_b32 s46, 1, 0')
    A('s_cselect_b32 s17, 256, s16')
    A('s_cmp_eq_u32 s30, 0')
    A('s_cselect_b32 s18, s2, s17')
    A('s_lshr_b32 s19, s18, 2')
    A(f's_mul_i32 s19, s19, {CPS}')
    A('s_and_b32 s31, s18, 3')
    A('s_lshl_b32 s31, s31, 2')
    A('s_add_u32 s19, s19, s31')
    A(f's_add_u32 s19, s19, {ZR_OFF}')
    A('v_lshlrev_b32 v3, 4, v2')
    A('s_waitcnt lgkmcnt(0)')
    srd(A, 12, 28, WS_BYTES)
    pool = Pool(80, 30)
    cx = CxS(A, pool) if OPT.get('scalar') else Cx(A, pool)
    x = []
    for n1 in range(16):
        r = pool.get()
        A(f'buffer_load_dword v{r+1}, v3, s[12:15], s19 offen offset:{(n1%2)*2048}')
        if n1 % 2 == 1 and n1 < 15: A('s_add_u32 s19, s19, 4096')
        x.append(V(r))
    WR1 = 140; WR2 = 148; WX = 20
    A('v_lshlrev_b32 v14, 2, v0')
    A('v_sub_u32 v15, 1024, v14')
    A('v_sub_u32 v16, 8192, v14')
    A('v_and_b32 v16, 8191, v16')
    def wloads(dst1, dst2, c1, c2):
        if dst1 is not None:
            for k3 in range(8):
                A(f'buffer_load_dword v{dst1+k3}, v14, s[12:15], s{c1 if k3 < 4 else c1+1} offen offset:{1024*(k3%4)}')
        if dst2 is not None:
            A(f'buffer_load_dword v{dst2}, v16, s[12:15], s{c2} offen')
            for k3 in range(1, 8):
                kk = 7 - k3
                A(f'buffer_load_dword v{dst2+k3}, v15, s[12:15], s{c2 if kk < 4 else c2+1} offen offset:{1024*(kk%4)}')
    A('s_lshl_b32 s36, s2, 13')
    A(f's_add_u32 s36, s36, {WT_OFF}')
    A('s_add_u32 s37, s36, 4096')
    A('s_lshl_b32 s38, s16, 13')
    A(f's_add_u32 s38, s38, {WT_OFF}')
    A('s_add_u32 s39, s38, 4096')
    if not OPT.get('wlate'):
        wloads(WR1, WR2, 36, 38)
        A('s_cmp_eq_u32 s46, 0')
        A(f's_cbranch_scc1 L_{tag}_nox')
        wloads(WX+8, WX, 38, 36)
        A.label(f'L_{tag}_nox')
    TW = {k: 40 + 2*k for k in range(16)}
    A('v_cvt_f32_u32 v4, v2')
    A(f'v_mul_f32 v4, 0x{f2u(1/2048):08x}, v4')
    gen_tw(A, 4, 16, TW)
    A(f'v_mul_u32_u24 v9, {CS1}, v1')
    A('v_add_u32 v5, v9, v2')
    A('v_lshlrev_b32 v5, 3, v5')
    A('v_lshrrev_b32 v6, 3, v2')
    A('v_and_b32 v7, 7, v2')
    A(f'v_mul_u32_u24 v8, {K1S}, v6')
    A('v_add3_u32 v8, v8, v9, v7')
    A('v_lshlrev_b32 v8, 3, v8')
    A(f'v_mul_u32_u24 v9, {CS2}, v1')
    A(f'v_mul_u32_u24 v10, {P2P}, v6')
    A('v_add3_u32 v10, v10, v9, v7')
    A('v_lshlrev_b32 v10, 3, v10')
    A(f'v_mul_u32_u24 v11, {P2P*8}, v0')
    A('v_sub_u32 v13, 256, v0')
    A('v_and_b32 v13, 255, v13')
    A(f'v_mul_u32_u24 v13, {P2P*8}, v13')
    A(f's_mov_b32 s47, {CS2*8}')
    A('s_cmp_eq_u32 s46, 1')
    A('s_cselect_b32 s47, 0, s47')
    A('v_add_u32 v13, s47, v13')
    A('v_cvt_f32_u32 v12, v7')
    T8 = 72
    A(f'v_mul_f32 v17, 0x{f2u(1/8):08x}, v12')
    A('v_add_u32 v18, -128, v0')
    A('s_lshl_b32 s47, s46, 3')
    A('s_sub_u32 s47, 8, s47')
    A('v_cmp_gt_u32 vcc, s47, v18')
    A('s_nop 1')
    A('v_cndmask_b32 v17, 0, v17, vcc')
    A(f'v_cos_f32 v{T8}, v17')
    A(f'v_sin_f32_e64 v{T8+1}, -v17')
    A(f'v_mul_f32 v12, 0x{f2u(1/128):08x}, v12')
    A('v_cvt_f32_u32 v17, s2')
    A(f'v_mul_f32 v17, 0x{f2u(1/1024):08x}, v17')
    A('v_cos_f32 v18, v17')
    A('v_sin_f32_e64 v19, -v17')
    A('s_nop 0')
    A('v_readfirstlane_b32 s44, v18')
    A('v_readfirstlane_b32 s45, v19')
    A.stamp(1)
    A('s_waitcnt vmcnt(0)' if OPT.get('wlate') else 's_waitcnt vmcnt(16)')
    A.stamp(2)
    for v in x:
        A(f'v_lshlrev_b32 v{v.r}, 16, v{v.r+1}')
        A(f'v_and_b32 v{v.r+1}, 0xffff0000, v{v.r+1}')
    y = cx.dft(x, -1, consts)
    for k1 in range(16):
        v = y[k1]
        if k1: v = cx.cmul(v.r, v, P(TW[k1]))
        v = cx.resolve(v)
        A(f'ds_write_b64 v5, {P(v.r)} offset:{k1*K1S*8}')
        pool.put(v.r)
    if OPT.get('wlate'):
        wloads(WR1, WR2, 36, 38)
        A('s_cmp_eq_u32 s46, 0')
        A(f's_cbranch_scc1 L_{tag}_nox2')
        wloads(WX+8, WX, 38, 36)
        A.label(f'L_{tag}_nox2')
    gen_tw(A, 12, 16, TW)
    A('s_waitcnt lgkmcnt(0)')
    A('s_barrier')
    if OPT.get('hyb') == 3:
        cx = CxS(A, pool); OPT['scalar'] = 1
    x = []
    for n2 in range(16):
        r = pool.get()
        A(f'ds_read_b64 {P(r)}, v8 offset:{n2*64}')
        x.append(V(r))
    A('s_waitcnt lgkmcnt(0)')
    A('s_barrier')
    y = cx.dft(x, -1, consts)
    for k2 in range(16):
        v = y[k2]
        if k2: v = cx.cmul(v.r, v, P(TW[k2]))
        else: v = cx.cmul(v.r, v, P(T8))
        v = cx.resolve(v)
        A(f'ds_write_b64 v10, {P(v.r)} offset:{k2*16*P2P*8}')
        pool.put(v.r)
    A('s_waitcnt lgkmcnt(0)')
    A('s_barrier')
    sc = 1.0/(2*2048*1024)
    A(f's_mov_b32 s42, 0x{f2u(sc):08x}')
    A(f's_mov_b32 s43, 0x{f2u(sc):08x}')
    A('s_mov_b32 s48, s46')
    DA = 100; DB = 116
    pool.free = [r for r in pool.free if not (100 <= r < 132) and not (80 <= r < 96)]
    A('s_cmp_eq_u32 s46, 0')
    A(f's_cbranch_scc1 L_{tag}_nopf')
    A(f's_mov_b32 s52, {WT_OFF + 256*8192}')
    A(f's_mov_b32 s53, {WT_OFF + 256*8192 + 4096}')
    wloads(80, 88, 52, 52)
    A.label(f'L_{tag}_nopf')
    if OPT.get('hyb') == 4:
        cx = CxS(A, pool); OPT['scalar'] = 1
    A.label(f'L_{tag}_st3')
    for (ad, base) in ((11, DA), (13, DB)):
        for q in range(4):
            A(f'ds_read_b128 v[{base+4*q}:{base+4*q+3}], v{ad} offset:{16*q}')
    A('s_waitcnt lgkmcnt(4)')
    a = cx.dft([V(DA+2*n) for n in range(8)], -1, consts)
    A('s_waitcnt lgkmcnt(0)')
    b = cx.dft([V(DB+2*n) for n in range(8)], -1, consts)
    a = [cx.resolve(v) for v in a]; b = [cx.resolve(v) for v in b]
    A('s_barrier')
    A.stamp(3)
    A('s_cmp_eq_u32 s46, 0')
    A(f's_cbranch_scc1 L_{tag}_norot')
    A('v_cmp_eq_u32 vcc, 0, v0')
    A('s_and_saveexec_b64 s[50:51], vcc')
    A(f'v_mov_b32 v74, v{b[0].r}'); A(f'v_mov_b32 v75, v{b[0].r+1}')
    for i in range(7):
        A(f'v_mov_b32 v{b[i].r}, v{b[i+1].r}'); A(f'v_mov_b32 v{b[i].r+1}, v{b[i+1].r+1}')
    A(f'v_mov_b32 v{b[7].r}, v74'); A(f'v_mov_b32 v{b[7].r+1}, v75')
    A('s_mov_b64 exec, s[50:51]')
    A.label(f'L_{tag}_norot')
    A('s_waitcnt vmcnt(0)')
    if OPT.get('hyb') == 1:
        cx = CxS(A, pool); OPT['scalar'] = 1
    z1 = [None]*8; z2 = [None]*8
    W1 = 74; W2 = 76; WT = 78
    for k3 in range(8):
        Av = a[k3]; Bv = b[7-k3]
        A(f'v_lshlrev_b32 v{W1}, 16, v{WR1+k3}')
        A(f'v_and_b32 v{W1+1}, 0xffff0000, v{WR1+k3}')
        A(f'v_lshlrev_b32 v{W2}, 16, v{WR2+k3}')
        A(f'v_and_b32 v{W2+1}, 0xffff0000, v{WR2+k3}')
        A('s_cmp_eq_u32 s48, 0')
        A(f's_cbranch_scc1 L_{tag}_s{k3}')
        A(f'v_lshlrev_b32 v{WT}, 16, v{WX+k3}')
        A(f'v_and_b32 v{WT+1}, 0xffff0000, v{WX+k3}')
        A(f'v_add_f32 v{W1}, v{W1}, v{WT}'); A(f'v_sub_f32 v{W1+1}, v{W1+1}, v{WT+1}')
        A(f'v_mul_f32 v{W1}, 0.5, v{W1}'); A(f'v_mul_f32 v{W1+1}, 0.5, v{W1+1}')
        A(f'v_lshlrev_b32 v{WT}, 16, v{WX+8+k3}')
        A(f'v_and_b32 v{WT+1}, 0xffff0000, v{WX+8+k3}')
        A(f'v_add_f32 v{W2}, v{W2}, v{WT}'); A(f'v_sub_f32 v{W2+1}, v{W2+1}, v{WT+1}')
        A(f'v_mul_f32 v{W2}, 0.5, v{W2}'); A(f'v_mul_f32 v{W2+1}, 0.5, v{W2+1}')
        A.label(f'L_{tag}_s{k3}')
        E = pool.get(); O = pool.get()
        if OPT.get('scalar'):
            for r in (W1, W1+1, W2, W2+1): A(f'v_mul_f32 v{r}, s42, v{r}')
            A(f'v_add_f32 v{E}, v{Av.r}, v{Bv.r}'); A(f'v_sub_f32 v{E+1}, v{Av.r+1}, v{Bv.r+1}')
            A(f'v_sub_f32 v{O}, v{Av.r}, v{Bv.r}'); A(f'v_add_f32 v{O+1}, v{Av.r+1}, v{Bv.r+1}')
        else:
            A(f'v_pk_mul_f32 {P(W1)}, {P(W1)}, s[42:43]')
            A(f'v_pk_mul_f32 {P(W2)}, {P(W2)}, s[42:43]')
            A(f'v_pk_add_f32 {P(E)}, {P(Av.r)}, {P(Bv.r)} neg_hi:[0,1]')
            A(f'v_pk_add_f32 {P(O)}, {P(Av.r)}, {P(Bv.r)} neg_lo:[0,1]')
        T = cx.cmul(O, V(O), 's[44:45]')
        Pv = cx.addq(Av.r, V(E), T, 3)
        Qv = cx.addq(Bv.r, V(E), T, 1)
        Y1 = cx.cmul(Pv.r, Pv, P(W1))
        Y2 = cx.cmul(Qv.r, Qv, P(W2), conj=True)
        S1 = cx.addq(E, Y1, Y2, 0)
        D1 = cx.addq(O, Y1, Y2, 2)
        U = cx.cmul(O, D1, 's[44:45]', conj=True)
        z1[k3] = cx.addq(Av.r, S1, U, 1)
        if OPT.get('scalar'):
            A(f'v_add_f32 v{Bv.r}, v{E}, v{O+1}'); A(f'v_sub_f32 v{Bv.r+1}, v{O}, v{E+1}')
        else:
            A(f'v_pk_add_f32 {P(Bv.r)}, {P(E)}, {P(O)} op_sel:[0,1] op_sel_hi:[1,0] neg_hi:[1,0]')
        z2[7-k3] = V(Bv.r)
        pool.put(E); pool.put(O)
    A.stamp(4)
    if OPT.get('hyb') == 2:
        cx = CxS(A, pool)
    y = cx.dft(z1, +1, consts)
    for n3 in range(8):
        v = cx.resolve(y[n3])
        A(f'ds_write_b64 v11, {P(v.r)} offset:{n3*8}')
        pool.put(v.r)
    A('s_cmp_eq_u32 s46, 1')
    A(f's_cbranch_scc1 L_{tag}_mnext')
    y = cx.dft(z2, +1, consts)
    for n3 in range(8):
        v = cx.resolve(y[n3])
        A(f'ds_write_b64 v13, {P(v.r)} offset:{n3*8}')
        pool.put(v.r)
    A(f's_branch L_{tag}_st3done')
    A.label(f'L_{tag}_mnext')
    A('s_cmp_eq_u32 s48, 0')
    A(f's_cbranch_scc1 L_{tag}_st3done')
    A('s_mov_b32 s48, 0')
    for r in range(16): A(f'v_mov_b32 v{WR1+r}, v{80+r}')
    A(f'v_add_u32 v11, {CS2*8}, v11')
    A(f'v_add_u32 v13, {CS2*8}, v13')
    A('s_mov_b32 s44, 0')
    A('s_mov_b32 s45, -1.0')
    A(f's_branch L_{tag}_st3')
    A.label(f'L_{tag}_st3done')
    pool.free = sorted(set(range(80, 140, 2)))
    A('s_waitcnt lgkmcnt(0)')
    A('s_barrier')
    x = []
    for k2 in range(16):
        r = pool.get()
        A(f'ds_read_b64 {P(r)}, v10 offset:{k2*16*P2P*8}')
        x.append(V(r))
    A('s_waitcnt lgkmcnt(0)')
    A('s_barrier')
    for k2 in range(16):
        x[k2] = cx.cmul(x[k2].r, x[k2], P(TW[k2]) if k2 else P(T8), conj=True)
    y = cx.dft(x, +1, consts)
    for n2 in range(16):
        v = cx.resolve(y[n2])
        A(f'ds_write_b64 v8, {P(v.r)} offset:{n2*64}')
        pool.put(v.r)
    gen_tw(A, 4, 16, TW)
    A('s_waitcnt lgkmcnt(0)')
    A('s_barrier')
    x = []
    for k1 in range(16):
        r = pool.get()
        A(f'ds_read_b64 {P(r)}, v5 offset:{k1*K1S*8}')
        x.append(V(r))
    A('v_lshlrev_b32 v3, 2, v2')
    A('s_lshl_b32 s19, s18, 13')
    A(f's_add_u32 s19, s19, {ZP_OFF}')
    A('s_waitcnt lgkmcnt(0)')
    for k1 in range(1, 16):
        x[k1] = cx.cmul(x[k1].r, x[k1], P(TW[k1]), conj=True)
    y = cx.dft(x, +1, consts)
    A.stamp(5)
    for n1 in range(16):
        v = cx.resolve(y[n1])
        A(f'v_cvt_pk_bf16_f32 v{v.r}, v{v.r}, v{v.r+1}')
        A(f'buffer_store_dword v{v.r}, v3, s[12:15], s19 offen offset:{(n1%8)*512}')
        if n1 == 7: A('s_add_u32 s19, s19, 4096')
    A.stamp(6)
    A.stamp_flush(7, 12, 0)
    A('s_endpgm')
    return 156
```

```python
from asmlib import *
from kA import srd
from roles_c import *
from roles_b import US, UCH, KCH, sigbase, LOG2E
import math
LDS_KC = 2*(UCH + KCH)
KO_P = 4160; KO_X = 6208; KO_T = 14400

def role_kc2(A, tag):
    A.stamp(0)
    A('s_load_dwordx8 s[64:71], s[0:1], 32')
    A('s_load_dwordx4 s[72:75], s[0:1], 64')
    A('s_load_dwordx2 s[80:81], s[0:1], 96')
    A('v_lshrrev_b32 v1, 6, v0')
    A('s_nop 0')
    A('v_readfirstlane_b32 s30, v1')
    A('v_and_b32 v2, 63, v0')
    A('s_lshr_b32 s28, s30, 1')
    A('s_and_b32 s29, s30, 1')
    A('s_lshl_b32 s31, s2, 1')
    A('s_add_u32 s31, s31, s28')
    A(f's_mul_i32 s48, s28, {UCH+KCH}')
    A(f's_add_u32 s59, s48, {UCH}')
    A('s_waitcnt lgkmcnt(0)')
    srd(A, 8, 64, 262144)
    srd(A, 12, 66, 262144)
    srd(A, 20, 68, 262144)
    srd(A, 24, 70, 262144)
    srd(A, 32, 72, 2048)
    srd(A, 36, 74, 2048)
    srd(A, 44, 80, WS_BYTES)
    A('v_lshlrev_b32 v3, 1, v2')
    A('s_lshl_b32 s50, s31, 8')
    A('s_lshl_b32 s49, s29, 7')
    A('s_add_u32 s50, s50, s49')
    A('s_lshl_b32 s49, s31, 1')
    A('v_mov_b32 v4, 0')
    A('buffer_load_short_d16_hi v24, v3, s[8:11], s50 offen')
    A('buffer_load_short_d16_hi v25, v3, s[12:15], s50 offen')
    A('buffer_load_short_d16_hi v26, v3, s[20:23], s50 offen')
    A('buffer_load_short_d16_hi v27, v3, s[24:27], s50 offen')
    A('buffer_load_short_d16_hi v14, v4, s[32:35], s49 offen')
    A('buffer_load_short_d16_hi v15, v4, s[36:39], s49 offen')
    A('v_lshlrev_b32 v3, 4, v2')
    A('s_lshl_b32 s49, s31, 12')
    A('s_lshl_b32 s40, s29, 11')
    A('s_add_u32 s49, s49, s40')
    A(f's_add_u32 s50, s49, {UT_OFF}')
    UR = 112
    for i in range(2):
        A(f'buffer_load_dwordx4 v[{UR+4*i}:{UR+4*i+3}], v3, s[44:47], s50 offen offset:{1024*i}')
    A('s_lshl_b32 s51, s29, 10')
    A('s_add_u32 s51, s51, s59')
    A(f's_add_u32 s51, s51, {KO_P}')
    A('v_add_u32 v7, s51, v3')
    A('v_and_b32 v16, 15, v2')
    A('v_lshrrev_b32 v17, 4, v2')
    A('v_cvt_f32_u32 v18, v16')
    A(f'v_mul_f32 v19, 0x{f2u(16.0):08x}, v18')
    A('v_cmp_eq_u32 s[54:55], 0, v16')
    A(f'v_mov_b32 v20, 0x{f2u(256.0):08x}')
    A('s_nop 0')
    A('v_cndmask_b32 v19, v19, v20, s[54:55]')
    A('v_lshlrev_b32 v21, 6, v17')
    A('v_add_u32 v21, s51, v21')
    ACC = [32 + 4*h for h in range(4)]
    for r in range(32, 48): A(f'v_mov_b32 v{r}, 0')
    A('v_mov_b32 v8, 0'); A('v_mov_b32 v9, 0'); A('v_mov_b32 v10, 0'); A('v_mov_b32 v11, 0')
    A('s_mul_i32 s40, s29, 1280')
    A('s_add_u32 s40, s40, s48')
    A('v_add_u32 v6, s40, v3')
    A('ds_write_b128 v6, v[8:11]')
    A('s_mov_b64 exec, 0xffff')
    A('ds_write_b128 v6, v[8:11] offset:1024')
    A('s_mov_b64 exec, -1')
    A('s_waitcnt vmcnt(2)')
    A(f'v_mul_f32 v14, 0x{f2u(LOG2E):08x}, v14')
    A('v_exp_f32 v14, v14')
    A(f'v_mul_f32 v24, 0x{f2u(LOG2E):08x}, v24')
    A('v_exp_f32 v24, v24')
    A('v_cvt_pk_bf16_f32 v14, v14, v14')
    A('v_lshlrev_b32 v14, 16, v14')
    A('v_cvt_pk_bf16_f32 v24, v24, v24')
    A('v_lshlrev_b32 v24, 16, v24')
    A('v_mul_f32 v25, v25, v14')
    A('v_mul_f32 v24, v24, v14')
    A(f'v_mul_f32 v24, 0x{f2u(-LOG2E):08x}, v24')
    A(f'v_mul_f32 v25, 0x{f2u(1/(2*math.pi)):08x}, v25')
    A('v_add_f32 v14, v14, v14')
    A('v_mul_f32 v26, v26, v14')
    A('v_mul_f32 v27, v27, v14')
    A('v_max_f32_e64 v28, |v26|, |v27|')
    for off in (0x041F, 0x081F, 0x101F, 0x201F, 0x401F):
        A(f'ds_swizzle_b32 v29, v28 offset:{off}')
        A('s_waitcnt lgkmcnt(0)')
        A('v_max_f32 v28, v28, v29')
    A('s_nop 0')
    A('v_readlane_b32 s40, v28, 0')
    A('v_readlane_b32 s41, v28, 32')
    A('s_nop 1')
    A('v_mov_b32 v28, s40')
    A('v_max_f32 v28, s41, v28')
    A('v_frexp_exp_i32_f32 v13, v28')
    A('v_sub_u32 v30, 0, v13')
    A('v_ldexp_f32 v26, v26, v30')
    A('v_ldexp_f32 v27, v27, v30')
    A('v_cvt_pk_f16_f32 v26, v26, v27')
    A('ds_write_b128 v7, v[24:27]')
    A.stamp(1)
    GF = [48 + 4*h for h in range(4)]
    EF = [64 + 4*h for h in range(4)]
    PR = 80
    pool = Pool(96, 8)
    cx = Cx(A, pool)
    A('s_mov_b32 s56, 0')
    A.label(f'L_{tag}_kg')
    for q in range(4):
        A(f'ds_read_b128 v[{PR+4*q}:{PR+4*q+3}], v21 offset:{16*q}')
    A('v_add_u32 v21, 256, v21')
    for q in range(4):
        A(f's_waitcnt lgkmcnt({3-q})')
        p = PR + 4*q
        E = pool.get(); F = pool.get(); t = pool.get()
        for (Z, fl, sg) in ((E, 18, '-'), (F, 19, '')):
            A(f'v_mul_f32 v{t}, v{p}, v{fl}')
            A(f'v_mul_f32 v{t+1}, v{p+1}, v{fl}')
            A(f'v_exp_f32 v{t}, v{t}')
            A(f'v_fract_f32 v{t+1}, v{t+1}')
            A(f'v_cos_f32 v{Z}, v{t+1}')
            A(f'v_sin_f32_e64 v{Z+1}, {sg}v{t+1}')
            A(f'v_mul_f32 v{Z}, v{Z}, v{t}')
            A(f'v_mul_f32 v{Z+1}, v{Z+1}, v{t}')
        A(f'v_cvt_pk_f16_f32 v{EF[0]+q}, v{E}, v{E+1}')
        A(f'v_cvt_pk_f16_f32 v{F}, v{F}, v{F+1}')
        def hmul(d, x, w):
            A(f'v_pk_mul_f16 v{t}, v{x}, v{w} op_sel:[0,0] op_sel_hi:[1,0]')
            A(f'v_pk_fma_f16 v{d}, v{x}, v{w}, v{t} op_sel:[1,1,0] op_sel_hi:[0,1,1] neg_lo:[0,1,0]')
        hmul(t+1, F, p+2)
        A(f'v_cndmask_b32 v{GF[0]+q}, v{t+1}, v{p+2}, s[54:55]')
        hmul(GF[1]+q, t+1, F)
        hmul(F, F, F)
        hmul(EF[1]+q, EF[0]+q, EF[0]+q)
        hmul(GF[2]+q, GF[1]+q, F)
        hmul(F, F, F)
        hmul(EF[2]+q, EF[1]+q, EF[1]+q)
        hmul(GF[3]+q, GF[2]+q, F)
        hmul(EF[3]+q, EF[2]+q, EF[2]+q)
        pool.put(E); pool.put(F); pool.put(t)
    A('s_nop 1')
    for h in range(4):
        A(f'v_mfma_f32_16x16x32_f16 v[{ACC[h]}:{ACC[h]+3}], v[{GF[h]}:{GF[h]+3}], v[{EF[h]}:{EF[h]+3}], v[{ACC[h]}:{ACC[h]+3}]')
    A('s_add_u32 s56, s56, 1')
    A('s_cmp_lt_u32 s56, 4')
    A(f's_cbranch_scc1 L_{tag}_kg')
    A.stamp(2)
    A('v_lshrrev_b32 v7, 2, v2')
    A(f'v_mul_u32_u24 v7, {US}, v7')
    A('v_and_b32 v8, 3, v2')
    A('v_lshl_add_u32 v7, v8, 4, v7')
    A(f's_mul_i32 s40, s29, {32*US}')
    A('s_add_u32 s40, s40, s48')
    A('v_add_u32 v9, s40, v7')
    A('s_waitcnt vmcnt(0)')
    for i in range(2):
        A(f'ds_write_b128 v9, v[{UR+4*i}:{UR+4*i+3}] offset:{(32+16*i)*US}')
    A('s_lshl_b32 s52, s29, 12')
    A('s_add_u32 s52, s52, s59')
    A(f's_add_u32 s52, s52, {KO_X}')
    A('s_xor_b32 s53, s29, 1')
    A('s_lshl_b32 s53, s53, 12')
    A('s_add_u32 s53, s53, s59')
    A(f's_add_u32 s53, s53, {KO_X}')
    A('v_add_u32 v6, s52, v3')
    A('v_add_u32 v8, s53, v3')
    A(f's_add_u32 s58, s59, {KO_T}')
    A('v_lshlrev_b32 v22, 7, v17')
    A('v_lshl_add_u32 v22, v16, 1, v22')
    A('v_add_u32 v22, s58, v22')
    for r in range(32, 48): A(f'v_ldexp_f32 v{r}, v{r}, v13')
    for h in range(4):
        A(f'ds_write_b128 v6, v[{ACC[h]}:{ACC[h]+3}] offset:{1024*h}')
    A('s_waitcnt lgkmcnt(0)')
    A('s_barrier')
    for h in range(4):
        A(f'ds_read_b128 v[{48+4*h}:{51+4*h}], v8 offset:{1024*h}')
    for h in range(4):
        A(f's_waitcnt lgkmcnt({3-h})')
        for r in range(4):
            A(f'v_add_f32 v{ACC[h]+r}, v{ACC[h]+r}, v{48+4*h+r}')
            A(f'v_cvt_pk_bf16_f32 v{ACC[h]+r}, v{ACC[h]+r}, v{ACC[h]+r}')
    for r in range(4):
        A(f'ds_write_b16 v22, v{ACC[0]+r} offset:{32*r}')
    A('s_mov_b32 exec_lo, 0')
    for h in range(1, 4):
        for r in range(4):
            A(f'ds_write_b16 v22, v{ACC[h]+r} offset:{32*r + 256*h}')
    A('s_mov_b64 exec, 1')
    A(f'ds_write_b16 v22, v{ACC[3]} offset:1280')
    A('s_mov_b64 exec, -1')
    A(f's_sub_u32 s41, s58, {2*(0x4380-256)}')
    A('v_lshlrev_b32 v24, 2, v2')
    A('s_lshl_b32 s40, s29, 8')
    A('v_add_u32 v24, s40, v24')
    A('v_cvt_f32_u32 v23, v24')
    G0 = 48; G1 = 64
    for i in range(5):
        if i == 0:
            for e in range(4):
                r = (G0 if e % 2 == 0 else G1) + 2*i + e//2
                A(f'v_add_u32 v25, {-32+e}, v24')
                A('v_max_i32 v25, 0, v25')
                A('v_cvt_f32_u32 v27, v25')
                A('v_cvt_pk_bf16_f32 v27, v27, v27')
                A('v_and_b32 v27, 0xffff, v27')
                A(f'v_subrev_u32 v27, {0x4380-256}, v27')
                A('v_cmp_gt_u32 vcc, 128, v25')
                A('s_nop 1')
                A('v_cndmask_b32 v25, v27, v25, vcc')
                A('v_lshl_add_u32 v25, v25, 1, s58')
                op = 'ds_read_u16_d16' if e % 2 == 0 else 'ds_read_u16_d16_hi'
                A(f'{op} v{r}, v25')
        else:
            for e2 in range(2):
                A(f'v_add_f32 v25, 0x{f2u(float(512*i-32+2*e2)):08x}, v23')
                A(f'v_add_f32 v26, 0x{f2u(float(512*i-32+2*e2+1)):08x}, v23')
                if i == 4:
                    A(f'v_min_f32 v25, 0x{f2u(2047.0):08x}, v25')
                    A(f'v_min_f32 v26, 0x{f2u(2047.0):08x}, v26')
                A('v_cvt_pk_bf16_f32 v25, v25, v26')
                A('v_lshrrev_b32 v26, 16, v25')
                A('v_and_b32 v25, 0xffff, v25')
                A('v_lshl_add_u32 v25, v25, 1, s41')
                A('v_lshl_add_u32 v26, v26, 1, s41')
                A(f'ds_read_u16_d16 v{G0+2*i+e2}, v25')
                A(f'ds_read_u16_d16_hi v{G1+2*i+e2}, v26')
    A('v_lshlrev_b32 v26, 3, v2')
    A('s_lshl_b32 s40, s29, 9')
    A('s_add_u32 s40, s40, s59')
    A('v_add_u32 v23, s40, v26')
    A('s_waitcnt lgkmcnt(0)')
    for r in range(10): A(f'v_or_b32 v{G0+r}, v{G0+r}, v{G1+r}')
    A('v_cmp_gt_u32 vcc, 32, v24')
    A('s_nop 1')
    A(f'v_cndmask_b32_e64 v{G0}, v{G0}, 0, vcc')
    A(f'v_cndmask_b32_e64 v{G0+1}, v{G0+1}, 0, vcc')
    for i in range(4):
        A(f'ds_write_b64 v23, v[{G0+2*i}:{G0+2*i+1}] offset:{1024*i}')
    A('s_cmp_eq_u32 s29, 1')
    A(f's_cbranch_scc1 L_{tag}_c0')
    A('s_mov_b64 exec, 0xff')
    A(f'ds_write_b64 v23, v[{G0+8}:{G0+9}] offset:4096')
    A('s_mov_b64 exec, -1')
    A.label(f'L_{tag}_c0')
    A('s_waitcnt lgkmcnt(0)')
    A('s_barrier')
    H0 = 64
    for i in range(5):
        A(f'ds_read_b64 v[{H0+2*i}:{H0+2*i+1}], v23 offset:{1024*i+8}')
    for i in range(5):
        if i == 4:
            A('s_cmp_eq_u32 s29, 1')
            A(f's_cbranch_scc1 L_{tag}_kdone')
        if i == 0: A('s_waitcnt lgkmcnt(0)')
        d0, d1, d2, d3 = G0+2*i, G0+2*i+1, H0+2*i, H0+2*i+1
        if i == 4: A('s_mov_b64 exec, 0x7f')
        A(f'v_alignbit_b32 v26, v{d1}, v{d0}, 16')
        A(f'v_alignbit_b32 v27, v{d2}, v{d1}, 16')
        A(f'v_mov_b32 v28, v27')
        A(f'v_alignbit_b32 v29, v{d3}, v{d2}, 16')
        A(f'ds_write_b64 v23, v[26:27] offset:{1024*i + sigbase(1)}')
        A(f'v_mov_b32 v30, v{d1}')
        A(f'v_mov_b32 v31, v{d2}')
        A(f'ds_write_b64 v23, v[30:31] offset:{1024*i + sigbase(2)}')
        A(f'ds_write_b64 v23, v[28:29] offset:{1024*i + sigbase(3)}')
    A('s_mov_b64 exec, -1')
    A.label(f'L_{tag}_kdone')
    A.stamp(3)
    A('v_and_b32 v16, 31, v2')
    A('v_lshrrev_b32 v17, 5, v2')
    A('v_add_u32 v18, 1, v16')
    A('v_and_b32 v18, 3, v18')
    A('v_mul_u32_u24 v19, 4160, v18')
    A('v_cmp_lt_u32 vcc, 0, v18')
    A('s_nop 1')
    A('v_cndmask_b32_e64 v20, 0, 8, vcc')
    A('v_add_u32 v19, v19, v20')
    A('v_lshlrev_b32 v20, 3, v17')
    A('v_sub_u32 v21, v16, v20')
    A('v_sub_u32 v21, v21, v18')
    A('v_add_u32 v21, 9, v21')
    A('v_lshl_add_u32 v19, v21, 1, v19')
    A('s_lshl_b32 s40, s29, 5')
    A('s_sub_u32 s41, s59, s40')
    A('v_add_u32 v19, s41, v19')
    A(f'v_mul_u32_u24 v20, {US}, v16')
    A('v_lshl_add_u32 v20, v17, 4, v20')
    A(f'v_add_u32 v20, {US}, v20')
    A('s_add_u32 s41, s48, s40')
    A('v_add_u32 v20, s41, v20')
    C0 = 32; C1 = 48
    for r in range(32, 64): A(f'v_mov_b32 v{r}, 0')
    A('s_waitcnt lgkmcnt(0)')
    A('s_barrier')
    NB = 4; FR = 64
    def issue(m):
        b = FR + 12*(m % NB)
        A(f'ds_read_b64 v[{b}:{b+1}], v19 offset:{32*(2*m+1)}')
        A(f'ds_read_b64 v[{b+2}:{b+3}], v19 offset:{32*(2*m+1)+8}')
        n = 2
        if m < 32:
            A(f'ds_read_b128 v[{b+4}:{b+7}], v20 offset:{(-m+31)*US}'); n += 1
        A(f'ds_read_b128 v[{b+8}:{b+11}], v20 offset:{(32-m+31)*US}'); n += 1
        return n
    cnt = []
    for k in range(NB-1): cnt.append(issue(k))
    for m in range(64):
        if m + NB - 1 < 64: cnt.append(issue(m+NB-1))
        pend = sum(cnt[m+1:])
        A(f's_waitcnt lgkmcnt({min(pend,15)})')
        b = FR + 12*(m % NB)
        if m < 32:
            A(f'v_mfma_f32_32x32x16_bf16 v[{C0}:{C0+15}], v[{b}:{b+3}], v[{b+4}:{b+7}], v[{C0}:{C0+15}]')
        A(f'v_mfma_f32_32x32x16_bf16 v[{C1}:{C1+15}], v[{b}:{b+3}], v[{b+8}:{b+11}], v[{C1}:{C1+15}]')
    A.stamp(4)
    A(f'v_mul_u32_u24 v21, {US}, v16')
    A('v_lshlrev_b32 v22, 3, v17')
    A('v_add_u32 v24, v21, v22')
    A('v_sub_u32 v21, v21, v22')
    A(f'v_add_u32 v21, {32*US+8}, v21')
    A(f's_mul_i32 s40, s29, {32*US}')
    A('s_add_u32 s41, s48, s40')
    A('v_add_u32 v21, s41, v21')
    UE = 64
    for q in range(4):
        A(f'ds_read_b64 v[{UE+2*q}:{UE+2*q+1}], v21 offset:{16*q}')
    A('s_lshl_b32 s40, s29, 12')
    A('s_add_u32 s41, s59, s40')
    A('v_add_u32 v25, s41, v3')
    A('s_xor_b32 s40, s40, 4096')
    A('s_add_u32 s41, s59, s40')
    A('v_add_u32 v26, s41, v3')
    A('s_barrier')
    A('s_cmp_eq_u32 s29, 0')
    A(f's_cbranch_scc1 L_{tag}_noswap')
    for r in range(16):
        A(f'v_swap_b32 v{C0+r}, v{C1+r}')
    A.label(f'L_{tag}_noswap')
    for q in range(4):
        A(f'ds_write_b128 v25, v[{C1+4*q}:{C1+4*q+3}] offset:{1024*q}')
    A('s_waitcnt lgkmcnt(0)')
    A('s_barrier')
    for q in range(4):
        A(f'ds_read_b128 v[{C1+4*q}:{C1+4*q+3}], v26 offset:{1024*q}')
    A('s_mul_i32 s40, s29, 2560')
    A('s_add_u32 s40, s40, s59')
    A('s_add_u32 s40, s40, 8192')
    A('v_add_u32 v24, s40, v24')
    A('v_add_u32 v7, s40, v7')
    for q in range(4):
        A(f's_waitcnt lgkmcnt({3-q})')
        ur = UE + 2*q
        for e in range(4):
            pos = 3 - e
            src = ur + pos//2
            o = 26 + e
            A(f'v_add_f32 v{C0+4*q+e}, v{C0+4*q+e}, v{C1+4*q+e}')
            if pos % 2 == 0: A(f'v_lshlrev_b32 v{o}, 16, v{src}')
            else: A(f'v_and_b32 v{o}, 0xffff0000, v{src}')
            A(f'v_mul_f32 v{o}, v{o}, v15')
            A(f'v_cvt_pk_bf16_f32 v{o}, v{o}, v{C0+4*q+e}')
            A(f'v_lshlrev_b32 v25, 16, v{o}')
            A(f'v_and_b32 v{o}, 0xffff0000, v{o}')
            A(f'v_add_f32 v{o}, v{o}, v25')
        A('v_cvt_pk_bf16_f32 v30, v26, v27')
        A('v_cvt_pk_bf16_f32 v31, v28, v29')
        A(f'ds_write_b64 v24, v[30:31] offset:{16*q}')
    for i in range(2):
        A(f'ds_read_b128 v[{UR+4*i}:{UR+4*i+3}], v7 offset:{16*i*US}')
    A(f's_add_u32 s50, s49, {YT_OFF}')
    for i in range(2):
        A(f's_waitcnt lgkmcnt({1-i})')
        A(f'buffer_store_dwordx4 v[{UR+4*i}:{UR+4*i+3}], v3, s[44:47], s50 offen offset:{1024*i}')
    A.stamp(5)
    A.stamp_flush(6, 44, 0)
    A('s_endpgm')
    return 128
```
